```python
import torch

def _softmax(x, axis=-1):
    return torch.softmax(x, dim=axis)
def _gelu(x):
    return torch.nn.functional.gelu(x, approximate="tanh")
def _silu(x):
    return torch.nn.functional.silu(x)
def _sigmoid(x):
    return torch.sigmoid(x)
def _layernorm(x, axis=-1, eps=1e-5):
    m = x.mean(dim=axis, keepdim=True)
    v = x.var(dim=axis, keepdim=True, unbiased=False)
    return (x - m) / torch.sqrt(v + eps)
def _scatter_add(tgt, idx, src, axis=0):
    return tgt.clone().index_add_(axis, idx, src)
def _segment_sum(src, seg, n):
    out = torch.zeros((n,) + src.shape[1:], dtype=src.dtype)
    return out.index_add_(0, seg, src)
def _pad(x, pw):
    flat = tuple(v for pair in reversed(pw) for v in pair)
    return torch.nn.functional.pad(x, flat)

kernel_name = 'gather_scatter__edge_featured_mpnn_egc__graph'

def setup_inputs():

    _w = (lambda a: (lambda t: t.to(torch.bfloat16) if t.is_floating_point() else t)(torch.as_tensor(a)))
    N, deg, D, De = 25000, 32, 64, max(0, 1)
    E = N * deg
    return {
        "x": _w((lambda *s: torch.randn(*s, dtype=torch.bfloat16) * 0.2)(N, D)),
        "e_attr": _w((lambda *s: torch.randn(*s, dtype=torch.bfloat16) * 0.2)(E, De)),
        "src": _w((lambda lo, hi, *s: torch.randint(lo, hi, s))(0, N, E).to(torch.int64)),
        "dst": _w((lambda lo, hi, *s: torch.randint(lo, hi, s))(0, N, E).to(torch.int64)),
        "u_w": _w((lambda *s: torch.randn(*s, dtype=torch.bfloat16) * 0.05)(D, D)),
        "v_w": _w((lambda *s: torch.randn(*s, dtype=torch.bfloat16) * 0.05)(D, D)),
        "g_w": _w((lambda *s: torch.randn(*s, dtype=torch.bfloat16) * 0.2)(2 * D + De, D)),
    }

def reference(x, e_attr, src, dst, u_w, v_w, g_w):
    N, D = x.shape
    g_in = torch.concatenate([x[dst], x[src], e_attr], axis=-1)
    eta = _sigmoid(g_in @ g_w)
    hv = x @ v_w
    msg = eta * hv[src]
    agg = _segment_sum(msg, dst, N)
    return _silu(x @ u_w + agg)
```

```python
import sys
NAME = "gather_scatter__edge_featured_mpnn_egc__graph"
N = 25000; E = 800000
NB = 98
CH = 3136
WS_OFFT = 0x700000
LOG2E = 1.4426950408889634
import struct
def f2u(f): return struct.unpack('<I', struct.pack('<f', f))[0]

OPT = dict(nsc=18, prio=1, k1sc='', stamp=0)
for a in sys.argv[1:]:
    if '=' in a:
        k, v = a.split('=', 1)
        try: v = int(v)
        except ValueError: pass
        OPT[k] = v

L = []
def o(s): L.append('    ' + s)
def lab(s): L.append(s + ':')
def cm(s): L.append('    ; ' + s)
def vr(a, n=1): return f'v{a}' if n == 1 else f'v[{a}:{a+n-1}]'
def sr(a, n=1): return f's{a}' if n == 1 else f's[{a}:{a+n-1}]'
def srd(d, b, size):
    o(f's_mov_b32 s{d}, s{b}'); o(f's_mov_b32 s{d+1}, s{b+1}')
    o(f's_mov_b32 s{d+2}, {size}'); o(f's_mov_b32 s{d+3}, 0x20000')
def scan(v, t):
    for sh in (1, 2, 4, 8):
        o('s_nop 1')
        o(f'v_add_u32_dpp v{v}, v{v}, v{v} row_shr:{sh} row_mask:0xf bank_mask:0xf bound_ctrl:0')
    o('s_nop 1')
    o(f'v_add_u32_dpp v{v}, v{v}, v{v} row_bcast:15 row_mask:0xa bank_mask:0xf')
    o('s_nop 1')
    o(f'v_add_u32_dpp v{v}, v{v}, v{v} row_bcast:31 row_mask:0xc bank_mask:0xf')
def stamp(idx, kbase):
    if not OPT['stamp']: return
    o(f's_memrealtime s[98:99]')
    o('s_waitcnt lgkmcnt(0)')
    o(f's_mov_b32 s{kbase+idx}, s98')

K1_LDS = 2048 + CH * 8
def k1():
    L.append('.p2align 8'); L.append('.type part_kernel,@function'); lab('part_kernel')
    o('s_cmp_ge_u32 s2, 256'); o('s_cbranch_scc1 K1_END')
    o('s_load_dwordx4 s[4:7], s[0:1], 8')
    o('s_load_dwordx2 s[8:9], s[0:1], 24')
    o('s_load_dwordx2 s[10:11], s[0:1], 72')
    stamp(0, 80)
    o('s_and_b32 s3, s2, 7'); o('s_lshl_b32 s3, s3, 5'); o('s_lshr_b32 s12, s2, 3'); o('s_add_u32 s3, s3, s12')
    o(f's_mul_i32 s12, s3, {CH//4}')
    o('v_add_u32 v1, s12, v0')
    o(f'v_cmp_gt_u32 vcc, {CH//4}, v0')
    o(f's_mov_b32 s13, {E//4}')
    o('v_cmp_gt_u32 s[14:15], s13, v1')
    o('s_and_b64 s[14:15], s[14:15], vcc')
    o('v_lshlrev_b32 v2, 4, v1'); o('v_lshlrev_b32 v3, 3, v1')
    o('v_lshlrev_b32 v4, 2, v0'); o('v_mov_b32 v5, 0')
    o('v_cmp_gt_u32 vcc, 256, v0')
    o('s_mov_b64 exec, vcc')
    o('ds_write_b32 v4, v5')
    o('s_waitcnt lgkmcnt(0)')
    srd(16, 8, E*4); srd(20, 6, E*4); srd(24, 4, E*2)
    o('s_mov_b64 exec, s[14:15]')
    o('buffer_load_dwordx4 v[8:11], v2, s[16:19], 0 offen')
    o('buffer_load_dwordx4 v[12:15], v2, s[20:23], 0 offen')
    o('buffer_load_dwordx2 v[16:17], v3, s[24:27], 0 offen')
    srd(28, 10, WS_OFFT + 256*1024)
    o(f's_mov_b32 s36, {-NB & 0xffffffff:#x}'); o('s_mov_b32 s37, 0xffff0000')
    o('v_mov_b32 v5, 1')
    o('s_barrier')
    o('s_waitcnt vmcnt(2)')
    stamp(1, 80)
    for i in range(4):
        o(f'v_mul_u32_u24 v{28+i}, 5350, v{8+i}')
        o(f'v_lshrrev_b32 v{28+i}, 19, v{28+i}')
        o(f'v_mad_i32_i24 v{21+2*i}, v{28+i}, s36, v{8+i}')
        o(f'v_lshlrev_b32 v{28+i}, 2, v{28+i}')
        o(f'ds_add_rtn_u32 v{32+i}, v{28+i}, v5')
    for i in range(4): o(f'v_lshlrev_b32 v{21+2*i}, 2, v{21+2*i}')
    o('s_mov_b64 exec, -1')
    o('v_and_b32 v6, 63, v0'); o('v_lshlrev_b32 v6, 4, v6')
    o('s_waitcnt lgkmcnt(0)')
    o('s_barrier')
    o('ds_read_b128 v[36:39], v6')
    o('s_waitcnt lgkmcnt(0)')
    o('v_add_u32 v41, v36, v37'); o('v_add_u32 v42, v41, v38'); o('v_add_u32 v43, v42, v39')
    o('v_mov_b32 v44, v43')
    scan(44, 45)
    o('v_sub_u32 v44, v44, v43')
    o('v_add_u32 v45, v44, v36'); o('v_add_u32 v46, v44, v41'); o('v_add_u32 v47, v44, v42')
    o('ds_write_b128 v6, v[44:47] offset:1024')
    o('s_mov_b64 exec, s[14:15]')
    for i in range(4): o(f'ds_read_b32 v{28+i}, v{28+i} offset:1024')
    o('s_waitcnt vmcnt(0)')
    o('v_lshl_or_b32 v20, v16, 16, v12'); o('v_and_or_b32 v22, v16, s37, v13')
    o('v_lshl_or_b32 v24, v17, 16, v14'); o('v_and_or_b32 v26, v17, s37, v15')
    for i in range(4):
        o(f's_waitcnt lgkmcnt({3})')
        o(f'v_add_lshl_u32 v{28+i}, v{28+i}, v{32+i}, 3')
        o(f'ds_write_b64 v{28+i}, v[{20+2*i}:{21+2*i}] offset:2048')
    o('s_mov_b64 exec, -1')
    o('v_readfirstlane_b32 s38, v0'); o('s_lshr_b32 s38, s38, 6')
    o('s_cmp_ge_u32 s38, 4'); o('s_cbranch_scc1 K1_NOOFF')
    o('v_lshlrev_b32 v6, 8, v6')
    o('s_lshl_b32 s39, s38, 10'); o('s_lshl_b32 s40, s3, 2'); o('s_add_u32 s39, s39, s40'); o(f's_add_u32 s39, s39, {WS_OFFT}')
    for i in range(4):
        o(f's_cmp_eq_u32 s38, {i}'); o(f's_cbranch_scc0 K1_OFF{i}')
        o(f'v_lshl_or_b32 v7, v{36+i}, 16, v{44+i}')
        lab(f'K1_OFF{i}')
    o(f'buffer_store_dword v7, v6, s[28:31], s39 offen {OPT["k1sc"]}')
    lab('K1_NOOFF')
    o('v_lshlrev_b32 v4, 4, v0')
    o(f's_mul_i32 s39, s3, {CH*8}')
    o(f's_add_u32 s40, s39, {CH*4}')
    o(f'v_cmp_gt_u32 vcc, {CH//4}, v0')
    o('s_waitcnt lgkmcnt(0)')
    o('s_barrier')
    o('s_mov_b64 exec, vcc')
    o('ds_read_b128 v[8:11], v4 offset:2048')
    o(f'ds_read_b128 v[12:15], v4 offset:{2048+CH*4}')
    o('s_waitcnt lgkmcnt(1)')
    o(f'buffer_store_dwordx4 v[8:11], v4, s[28:31], s39 offen {OPT["k1sc"]}')
    o('s_waitcnt lgkmcnt(0)')
    o(f'buffer_store_dwordx4 v[12:15], v4, s[28:31], s40 offen {OPT["k1sc"]}')
    if OPT['stamp']:
        stamp(2, 80)
        o('s_waitcnt vmcnt(0)')
        stamp(3, 80)
        emit_stamps(80, 4, 10, 0x800000, 'K1')
    lab('K1_END'); o('s_endpgm')

def emit_stamps(kbase, n, wsreg, off, tag):
    o('v_cmp_eq_u32 vcc, 0, v0'); o('s_mov_b64 exec, vcc'); o(f's_cbranch_execz {tag}_NOST')
    srd(92, wsreg, 0x1000000)
    o('s_lshl_b32 s96, s2, 6'); o(f's_add_u32 s96, s96, {off}')
    o('v_mov_b32 v1, 0')
    for i in range(n):
        o(f'v_mov_b32 v2, s{kbase+i}')
        o(f'buffer_store_dword v2, v1, s[92:95], s96 offen offset:{4*i}')
        o('s_waitcnt vmcnt(0)')
    lab(f'{tag}_NOST')

RECS = 0; NTILE = 216; GT = NTILE*128; CNT = GT + NTILE*16; FLG = CNT + 512
BASE = 31744; CROW = 32256; DUMMY = 32512; NODE0 = DUMMY + 640
RING0 = 96000; RING1 = RING0 + 32768; K2_LDS = RING1 + 32768
MAXG = (NTILE - 24) * 4
assert FLG + 16 <= BASE and NODE0 + NB*640 <= RING0 and K2_LDS <= 163840
V_L = 1; CD = 2; AR = 6; PA = 10; PB = 11; PC = 12; PD = 13; CX = 14; XADR = 15
L8 = 16; AX = 18; VMAX = 20; TRA = 21; VJ0 = 22; VJ1 = 23; VLB = 24; ONE = 25
T0 = 26
BZ = 32; BH = 64; Z = (96, 128); H = 160; A = 192
BX = 208; TN = 212; TD = 216; F = 220; R = 228; XW = 232; GA = 234
RD = 96; RK = 128; OF = 144; PW = 160; PD_ = 208; WT = 240
S_W = 3; SX = 8; SWS = 12; SOUT = 16; SG = 20; SV = 24; SU = 28
S_SB = 32; S_RB = 33; S_LIM = 34; S_SAFE = 35; S_MORE = 36; S_N = 37; S_T = 38; S_T2 = 39
S_M0A = 40; S_M0B = 41; S_ADV1 = 42; S_ADV2 = 44; S_128 = 46; S_NL2 = 47
MK = 48
S_LO = 4; S_HI = 6
P_ = 80
def k2():
    L.append('.p2align 8'); L.append(f'.type {NAME}_kernel,@function'); lab(f'{NAME}_kernel')
    o('s_cmp_ge_u32 s2, 256'); o('s_cbranch_scc1 K2_END')
    o(f's_mov_b32 s{S_SAFE}, {OPT.get("safe",0)}')
    lab('K2_TOP')
    o('s_mov_b64 exec, -1')
    o(f's_load_dwordx2 s[48:49], s[0:1], 0')
    o(f's_load_dwordx8 s[52:59], s[0:1], 32')
    o(f's_load_dwordx2 s[50:51], s[0:1], 72')
    stamp(0, 80)
    o(f's_and_b32 s{S_SB}, s2, 7'); o(f's_lshl_b32 s{S_SB}, s{S_SB}, 5'); o(f's_lshr_b32 s{S_T}, s2, 3'); o(f's_add_u32 s{S_SB}, s{S_SB}, s{S_T}')
    o(f'v_readfirstlane_b32 s{S_W}, v0'); o(f's_lshr_b32 s{S_W}, s{S_W}, 6')
    o(f's_mov_b32 s{S_RB}, 0'); o(f's_mov_b32 s{S_LIM}, 32')
    o(f's_mov_b32 s{S_LO}, -1'); o(f's_mov_b32 s{S_LO+1}, 0'); o(f's_mov_b32 s{S_HI}, 0'); o(f's_mov_b32 s{S_HI+1}, -1')
    o(f's_mov_b32 s{S_ADV1}, 2048'); o(f's_mov_b32 s{S_ADV1+1}, 2048'); o(f's_mov_b32 s{S_ADV2}, 256'); o(f's_mov_b32 s{S_ADV2+1}, 256')
    o(f's_mov_b32 s{S_128}, 128'); o(f's_mov_b32 s{S_NL2}, {f2u(-LOG2E):#x}')
    o(f's_lshl_b32 s{S_M0A}, s{S_W}, 12'); o(f's_add_u32 s{S_M0A}, s{S_M0A}, {RING0}'); o(f's_add_u32 s{S_M0B}, s{S_M0A}, 32768')
    o(f'v_and_b32 v{V_L}, 63, v0')
    a, b, c, d, e, f = range(T0, T0+6)
    cm('segment lane constants')
    o(f'v_lshrrev_b32 v{a}, 4, v0')
    o(f'v_lshlrev_b32 v{OF}, 5, v{a}')
    o(f'v_and_b32 v{b}, 15, v0')
    o(f'v_lshlrev_b32 v{VLB}, 4, v{b}')
    o(f's_mov_b32 s{S_T}, {8*CH*8}')
    o(f'v_mad_u32_u24 v{VLB}, v{a}, s{S_T}, v{VLB}')
    cm('DMA constants')
    o(f'v_lshrrev_b32 v{a}, 4, v{V_L}'); o(f'v_and_b32 v{b}, 7, v{V_L}'); o(f'v_xor_b32 v{a}, v{a}, v{b}')
    o(f'v_lshlrev_b32 v{a}, 4, v{a}'); o(f'v_xor_b32 v{b}, 64, v{a}')
    o(f'v_add_u32 v{CD}, 3072, v{a}'); o(f'v_add_u32 v{CD+1}, 2048, v{b}'); o(f'v_add_u32 v{CD+2}, 1024, v{a}'); o(f'v_mov_b32 v{CD+3}, v{b}')
    o('s_waitcnt lgkmcnt(0)')
    srd(SWS, 50, WS_OFFT + 256*1024)
    issue_offs()
    srd(SG, 56, 129*128); srd(SV, 54, 8192); srd(SU, 52, 8192); srd(SOUT, 58, N*128)
    o(f's_sub_u32 s{SX}, s48, 3072'); o(f's_subb_u32 s{SX+1}, s49, 0'); o(f's_mov_b32 s{SX+2}, {N*128+3072}'); o(f's_mov_b32 s{SX+3}, 0x20000')
    if OPT['stamp']: o('s_mov_b64 s[90:91], s[50:51]')
    cm('weights')
    o(f'v_lshlrev_b32 v{a}, 4, v0')
    o(f's_movk_i32 s{S_T}, 8192')
    o(f'buffer_load_dwordx4 v[{WT}:{WT+3}], v{a}, s[{SG}:{SG+3}], s{S_T} offen')
    o(f'v_lshlrev_b32 v{b}, 4, v{V_L}')
    o(f's_movk_i32 s{S_T}, 16384')
    o(f'buffer_load_dwordx4 v[{WT+4}:{WT+7}], v{b}, s[{SG}:{SG+3}], s{S_T} offen')
    o(f's_lshl_b32 s{S_T}, s{S_W}, 10'); o(f's_add_u32 s{S_T}, s{S_T}, {RING1}')
    o(f's_mov_b32 m0, s{S_T}'); o('s_nop 0')
    o(f'buffer_load_dwordx4 v{a}, s[{SG}:{SG+3}], 0 offen lds')
    o(f's_add_u32 m0, s{S_T}, 16384'); o('s_nop 0')
    o(f'buffer_load_dwordx4 v{a}, s[{SV}:{SV+3}], 0 offen lds')
    o(f's_add_u32 m0, s{S_T}, 24576'); o('s_nop 0')
    o(f'buffer_load_dwordx4 v{a}, s[{SU}:{SU+3}], 0 offen lds')
    cm('own x rows -> ring slot 0')
    o(f's_and_b32 s{S_T}, s{S_W}, 3'); o(f's_lshl_b32 s{S_T}, s{S_T}, 5'); o(f's_mul_i32 s{S_T2}, s{S_SB}, {NB}'); o(f's_add_u32 s{S_T}, s{S_T}, s{S_T2}')
    o(f'v_lshrrev_b32 v{c}, 3, v{V_L}'); o(f'v_lshl_add_u32 v{c}, v{c}, 2, s{S_T}')
    o(f's_mov_b32 m0, s{S_M0A}')
    for q in range(4):
        o(f'v_lshl_add_u32 v{d}, v{c}, 7, v{CD+q}')
        if q: o(f'v_add_u32 v{d}, {128*q}, v{d}')
        o(f'buffer_load_dwordx4 v{d}, s[{SX}:{SX+3}], 0 offen offset:{1024*q} lds')
    prefill()
    cm('zero dummy XA row')
    o(f'v_cmp_gt_u32 vcc, 8, v0'); o('s_mov_b64 exec, vcc')
    o(f'ds_write_b128 v{a}, v[{RK+4}:{RK+7}] offset:{DUMMY}')
    o('s_mov_b64 exec, -1')
    cm('main loop lane constants')
    x, y, v_, u0, u1, hh = RK+8, RK+9, RK+10, RK+11, RK+12, RK+13
    g, gb, t1 = RK+14, RK+15, c
    o(f'v_and_b32 v{x}, 1, v{V_L}'); o(f'v_bfe_u32 v{y}, v{V_L}, 1, 1'); o(f'v_bfe_u32 v{v_}, v{V_L}, 2, 1')
    o(f'v_bfe_u32 v{u0}, v{V_L}, 3, 1'); o(f'v_bfe_u32 v{u1}, v{V_L}, 4, 1'); o(f'v_lshrrev_b32 v{hh}, 5, v{V_L}')
    o(f'v_lshl_add_u32 v{g}, v{v_}, 1, v{x}')
    o(f'v_xor_b32 v{gb}, v{v_}, v{u0}'); o(f'v_xor_b32 v{gb}, v{gb}, v{u1}')
    o(f'v_lshl_add_u32 v{gb}, v{gb}, 1, v{y}')
    o(f'v_lshl_add_u32 v{u0}, v{g}, 1, v{u1}')
    o(f'v_lshl_add_u32 v{PB}, v{u0}, 2, v{gb}')
    o(f'v_lshlrev_b32 v{PB}, 2, v{PB}')
    o(f'v_lshl_add_u32 v{u0}, v{gb}, 3, v{u0}')
    o(f'v_lshl_add_u32 v{u0}, v{u0}, 7, s{S_M0A}')
    o(f'v_lshl_add_u32 v{u1}, v{y}, 2, v{g}')
    o(f'v_xor_b32 v{u1}, v{u1}, v{hh}')
    for s in range(4):
        o(f'v_xor_b32 v{t1}, {2*s}, v{u1}')
        o(f'v_lshl_add_u32 v{AR+s}, v{t1}, 4, v{u0}')
    o(f'v_lshlrev_b32 v{t1}, 4, v{x}'); o(f'v_mov_b32 v{d}, 0x3f80'); o(f'v_lshlrev_b32 v{t1}, v{t1}, v{d}')
    o(f'v_cmp_eq_u32 vcc, 0, v{v_}'); o('s_nop 1')
    o(f'v_cndmask_b32 v{AX}, 0, v{t1}, vcc')
    o(f'v_sub_u32 v{AX+1}, v{t1}, v{AX}')
    o(f'v_cndmask_b32 v{AX+1}, v{AX+1}, 0, s[{S_HI}:{S_HI+1}]')
    o(f'v_bfe_u32 v{t1}, v{V_L}, 4, 1'); o(f'v_lshlrev_b32 v{t1}, 5, v{t1}'); o(f'v_and_b32 v{d}, 3, v{V_L}')
    o(f'v_lshl_add_u32 v{CX}, v{d}, 3, v{t1}')
    o(f'v_bfe_u32 v{d}, v{V_L}, 2, 2')
    o(f'v_lshlrev_b32 v{PC}, 2, v{d}')
    o(f'v_lshl_add_u32 v{e}, v{hh}, 3, v{d}'); o(f'v_lshl_add_u32 v{TRA}, v{e}, 7, v{CX}'); o(f'v_add_u32 v{TRA}, {RING1}, v{TRA}')
    o(f'v_cmp_eq_u32 vcc, 1, v{d}'); o(f'v_mov_b32 v{e}, {DUMMY}'); o(f'v_mov_b32 v{f}, {CROW}')
    o(f'v_cndmask_b32 v{XADR}, v{e}, v{f}, vcc'); o(f'v_add_u32 v{XADR}, v{XADR}, v{CX}')
    o(f'v_and_b32 v{L8}, 31, v{V_L}'); o(f'v_lshlrev_b32 v{L8}, 3, v{L8}'); o(f'v_mov_b32 v{L8+1}, v{L8}')
    o(f'v_mov_b32 v{VMAX}, 0'); o(f'v_mov_b32 v{ONE}, 1')
    o('s_waitcnt vmcnt(9)')
    stamp(1, 80)
    issue_recs()
    cm('scale W_B and c')
    o('s_waitcnt vmcnt(15)')
    o(f's_mov_b32 s{S_T}, 0xffff0000')
    for k in range(8):
        o(f'v_lshlrev_b32 v{WT+8}, 16, v{WT+k}'); o(f'v_and_b32 v{WT+9}, s{S_T}, v{WT+k}')
        o(f'v_mul_f32 v{WT+8}, s{S_NL2}, v{WT+8}'); o(f'v_mul_f32 v{WT+9}, s{S_NL2}, v{WT+9}')
        o(f'v_cvt_pk_bf16_f32 v{WT+k}, v{WT+8}, v{WT+9}')
    o(f'v_add_u32 v{a}, {RING1+8192}, v{a}')
    o(f'ds_write_b128 v{a}, v[{WT}:{WT+3}]')
    o(f'v_cmp_gt_u32 vcc, 8, v0'); o('s_mov_b64 exec, vcc')
    o(f'ds_write_b128 v{b}, v[{WT+4}:{WT+7}] offset:{CROW}')
    o('s_mov_b64 exec, -1')
    o('s_waitcnt vmcnt(8) lgkmcnt(0)')
    o('s_barrier')
    stamp(2, 80)
    cm('XA / XU')
    o(f's_lshr_b32 s{S_T}, s{S_W}, 2'); o(f's_mul_i32 s{S_T}, s{S_T}, 24576')
    o(f'v_add_u32 v{a}, s{S_T}, v{TRA}')
    for s in range(4): o(f'ds_read_b128 v[{A+4*s}:{A+4*s+3}], v{AR+s}')
    for t in range(2):
        for s in range(4):
            for hf in range(2):
                r = PW + (t*4+s)*4 + 2*hf
                o(f'ds_read_b64_tr_b16 v[{r}:{r+1}], v{a} offset:{s*2048+hf*512+t*64}')
        o(f's_waitcnt lgkmcnt(0)')
        for s in range(4):
            D = PD_ + 16*t; r = PW + (t*4+s)*4
            o(f'v_mfma_f32_32x32x16_bf16 v[{D}:{D+15}], v[{A+4*s}:{A+4*s+3}], v[{r}:{r+3}], ' + ('0' if s == 0 else f'v[{D}:{D+15}]'))
    cm('B operands')
    n = 0
    for mat, base in ((8192, BZ), (16384, BH)):
        for t in range(2):
            for s in range(4):
                for hf in range(2):
                    r = base + (t*4+s)*4 + 2*hf
                    o(f'ds_read_b64_tr_b16 v[{r}:{r+1}], v{TRA} offset:{mat+s*2048+hf*512+t*64}')
                    n += 1
                    if n % 8 == 0: o('s_waitcnt lgkmcnt(7)')
    o(f's_and_b32 s{S_T}, s{S_W}, 3'); o(f's_mul_i32 s{S_T2}, s{S_T}, {32*640}'); o(f's_add_u32 s{S_T2}, s{S_T2}, {NODE0}')
    o(f'v_lshrrev_b32 v{c}, 5, v{V_L}')
    o(f'v_mul_u32_u24 v{a}, {18*640}, v{c}'); o(f'v_mul_u32_u24 v{b}, {14*640}, v{c}')
    o(f'v_add_u32 v{a}, s{S_T2}, v{a}'); o(f'v_add_u32 v{b}, s{S_T2}, v{b}'); o(f'v_add_u32 v{b}, {2*640}, v{b}')
    def rowoff(r):
        x_, y_, u0_, u1_ = r & 1, (r >> 1) & 1, (r >> 2) & 1, r >> 3
        return (a if (u0_ ^ u1_) == 0 else b), (8*x_ + 4*u1_ + y_) * 640
    o(f's_cmp_ge_u32 s{S_W}, 4'); o('s_cbranch_scc1 K2_XU')
    o(f'v_lshrrev_b32 v{c}, 2, v{L8}'); o(f'v_add_u32 v{a}, v{a}, v{c}'); o(f'v_add_u32 v{b}, v{b}, v{c}')
    for k in range(32): o(f'v_mul_f32 v{PD_+k}, s{S_NL2}, v{PD_+k}')
    for k in range(16): o(f'v_cvt_pk_bf16_f32 v{PD_+2*k}, v{PD_+2*k}, v{PD_+2*k+1}')
    o(f's_cmp_eq_u32 s{S_T}, 3'); o('s_cbranch_scc1 K2_XA3')
    n = 0
    for t in range(2):
        for r in range(16):
            br, off = rowoff(r)
            o(f'ds_write_b16{"_d16_hi" if r & 1 else ""} v{br}, v{PD_+16*t+(r&~1)} offset:{off+64*t}')
            n += 1
            if n % 8 == 0: o('s_waitcnt lgkmcnt(7)')
    o('s_branch K2_HIST')
    lab('K2_XA3')
    o(f's_mov_b64 exec, s[{S_LO}:{S_LO+1}]')
    for t in range(2):
        for r in (0, 2):
            br, off = rowoff(r)
            o(f'ds_write_b16 v{br}, v{PD_+16*t+r} offset:{off+64*t}')
    o('s_mov_b64 exec, -1')
    o('s_branch K2_HIST')
    lab('K2_XU')
    o(f'v_add_u32 v{a}, v{a}, v{L8}'); o(f'v_add_u32 v{b}, v{b}, v{L8}')
    o(f's_cmp_eq_u32 s{S_T}, 3'); o('s_cbranch_scc1 K2_XU3')
    n = 0
    for t in range(2):
        for r in range(16):
            br, off = rowoff(r); tmp = PW + 2*r
            o(f'v_cvt_f64_f32 v[{tmp}:{tmp+1}], v{PD_+16*t+r}')
            o(f'ds_write_b64 v{br}, v[{tmp}:{tmp+1}] offset:{off+128+256*t}')
            n += 1
            if n % 8 == 0: o('s_waitcnt lgkmcnt(7)')
    o('s_branch K2_HIST')
    lab('K2_XU3')
    o(f's_mov_b64 exec, s[{S_LO}:{S_LO+1}]')
    for t in range(2):
        for r in (0, 2):
            br, off = rowoff(r); tmp = PW + 2*r + 8*t
            o(f'v_cvt_f64_f32 v[{tmp}:{tmp+1}], v{PD_+16*t+r}')
            o(f'ds_write_b64 v{br}, v[{tmp}:{tmp+1}] offset:{off+128+256*t}')
    o('s_mov_b64 exec, -1')
    o('s_branch K2_HIST')

    lab('K2_ROUND')
    o(f'v_lshrrev_b32 v{a}, 4, v0'); o(f'v_lshlrev_b32 v{OF}, 5, v{a}')
    issue_offs()
    o(f'v_lshlrev_b32 v{a}, 4, v0')
    prefill()
    o('s_waitcnt vmcnt(0)')
    issue_recs()
    o('s_waitcnt lgkmcnt(0)')
    o('s_barrier')

    lab('K2_HIST')
    stamp(3, 80)
    o('s_waitcnt lgkmcnt(0)')
    for i in range(8):
        o(f's_waitcnt vmcnt({7-i})')
        for k in range(2):
            m = MK + 4*i + 2*k
            o(f's_mov_b64 exec, s[{m}:{m+1}]')
            o(f'ds_add_rtn_u32 v{RK+2*i+k}, v{RD+4*i+2*k+1}, v{ONE} offset:{CNT}')
        if i == 6: o('s_waitcnt lgkmcnt(8)')
    o('s_mov_b64 exec, -1')
    o(f'v_max3_u32 v{a}, v{OF}, v{OF+1}, v{OF+2}'); o(f'v_max3_u32 v{a}, v{a}, v{OF+3}, v{OF+4}')
    o(f'v_max3_u32 v{a}, v{a}, v{OF+5}, v{OF+6}'); o(f'v_max_u32 v{a}, v{a}, v{OF+7}')
    o(f'v_lshrrev_b32 v{a}, 16, v{a}')
    o(f's_add_u32 s{S_T}, s{S_RB}, s{S_LIM}')
    o(f'v_cmp_lt_u32 vcc, s{S_T}, v{a}')
    o(f'v_mov_b32 v{b}, {FLG}')
    o('s_mov_b64 exec, vcc')
    o(f'ds_write_b32 v{b}, v{ONE}')
    o('s_mov_b64 exec, -1')
    o(f'v_lshlrev_b32 v{c}, 3, v{V_L}')
    o('s_waitcnt lgkmcnt(0)')
    o('s_barrier')
    stamp(4, 80)
    o(f'ds_read_b64 v[{e}:{f}], v{c} offset:{CNT}')
    o(f'ds_read_b32 v{b}, v{b}')
    o(f'v_and_b32 v{WT}, 0x1fc, v0')
    o(f'ds_read_b32 v{WT+1}, v{WT} offset:{CNT}')
    o('s_waitcnt lgkmcnt(1)')
    o(f'v_add_u32 v{e}, 7, v{e}'); o(f'v_add_u32 v{f}, 7, v{f}')
    o(f'v_lshrrev_b32 v{e}, 3, v{e}'); o(f'v_lshrrev_b32 v{f}, 3, v{f}')
    o(f'v_readfirstlane_b32 s{S_MORE}, v{b}')
    o(f'v_add_u32 v{f}, v{e}, v{f}'); o(f'v_mov_b32 v{a}, v{f}')
    scan(a, b)
    o('s_nop 0')
    o(f'v_readlane_b32 s{S_T}, v{a}, 63')
    o(f'v_sub_u32 v{a}, v{a}, v{f}')
    o(f'v_lshlrev_b32 v{a}, 5, v{a}'); o(f'v_lshl_add_u32 v{b}, v{e}, 5, v{a}')
    o(f's_cmp_gt_u32 s{S_T}, {MAXG}'); o('s_cbranch_scc0 K2_FITS')
    o(f's_mov_b32 s{S_LIM}, 16')
    o('s_waitcnt lgkmcnt(0)')
    o('s_barrier')
    o('s_branch K2_ROUND')
    lab('K2_FITS')
    o(f'ds_write_b64 v{c}, v[{a}:{b}] offset:{BASE}')
    o(f'ds_read_b32 v{WT+2}, v{WT} offset:{BASE}')
    for half in range(2):
        for j in range(8*half, 8*half+8):
            m = MK + 2*j
            o(f's_mov_b64 exec, s[{m}:{m+1}]')
            o(f'ds_read_b32 v{RD+2*j+1}, v{RD+2*j+1} offset:{BASE}')
        for j in range(8*half, 8*half+8):
            m = MK + 2*j
            o(f's_mov_b64 exec, s[{m}:{m+1}]')
            o('s_waitcnt lgkmcnt(7)')
            o(f'v_lshl_add_u32 v{RD+2*j+1}, v{RK+j}, 2, v{RD+2*j+1}')
            o(f'ds_write_b32 v{RD+2*j+1}, v{RD+2*j}')
        if half == 0: o('s_waitcnt lgkmcnt(7)')
    o('s_mov_b64 exec, -1')
    cm('group table')
    o(f'v_add_u32 v{WT+1}, 7, v{WT+1}'); o(f'v_lshrrev_b32 v{WT+1}, 3, v{WT+1}')
    o(f'v_lshrrev_b32 v{WT+2}, 3, v{WT+2}')
    o(f'v_lshl_add_u32 v{WT+1}, v{WT+1}, 2, v{WT+2}')
    o(f'v_and_b32 v{WT+3}, 3, v0'); o(f'v_lshl_add_u32 v{WT+2}, v{WT+3}, 2, v{WT+2}')
    o(f'v_mul_u32_u24 v{WT}, 160, v{WT}'); o(f'v_add_u32 v{WT}, {NODE0}, v{WT}')
    lab('K2_GT')
    o(f'v_cmp_lt_u32 vcc, v{WT+2}, v{WT+1}')
    o('s_and_b64 exec, exec, vcc'); o('s_cbranch_execz K2_GTD')
    o(f'ds_write_b32 v{WT+2}, v{WT} offset:{GT}')
    o(f'v_add_u32 v{WT+2}, 16, v{WT+2}')
    o('s_waitcnt lgkmcnt(8)')
    o('s_branch K2_GT')
    lab('K2_GTD')
    o('s_mov_b64 exec, -1')
    o(f's_add_u32 s{S_T}, s{S_T}, 3'); o(f's_lshr_b32 s{S_T}, s{S_T}, 2')
    o(f's_add_u32 s{S_N}, s{S_T}, 7'); o(f's_sub_u32 s{S_N}, s{S_N}, s{S_W}'); o(f's_lshr_b32 s{S_N}, s{S_N}, 3')
    o(f's_lshl_b32 s{S_T}, s{S_W}, 7'); o(f's_lshl_b32 s{S_T2}, s{S_W}, 4'); o(f's_add_u32 s{S_T2}, s{S_T2}, {GT}')
    o(f'v_lshrrev_b32 v{PA}, 3, v{V_L}'); o(f'v_lshl_add_u32 v{PA}, v{PA}, 4, s{S_T}')
    o(f'v_and_b32 v{PB}, 127, v{PB}'); o(f'v_add_u32 v{PB}, s{S_T}, v{PB}')
    o(f'v_and_b32 v{PC}, 15, v{PC}'); o(f'v_add_u32 v{PC}, s{S_T2}, v{PC}')
    o(f'v_lshrrev_b32 v{PD}, 5, v{V_L}'); o(f'v_lshl_add_u32 v{PD}, v{PD}, 3, s{S_T2}')
    o('s_waitcnt lgkmcnt(0)')
    o('s_barrier')
    stamp(5, 80)
    o(f's_cmp_eq_u32 s{S_N}, 0'); o('s_cbranch_scc1 K2_LOOPDONE')
    o(f's_cmp_lg_u32 s{S_SAFE}, 0'); o('s_cbranch_scc1 K2_SAFE')
    mainloop()
    o('s_branch K2_LOOPDONE')
    safeloop()
    lab('K2_LOOPDONE')
    o('s_waitcnt vmcnt(0) lgkmcnt(0)')
    stamp(6, 80)
    o('s_barrier')
    o(f's_cmp_eq_u32 s{S_MORE}, 0'); o('s_cbranch_scc1 K2_FIN')
    o(f's_add_u32 s{S_RB}, s{S_RB}, s{S_LIM}')
    o('s_branch K2_ROUND')
    lab('K2_FIN')
    stamp(7, 80)
    epilogue()
    if OPT['stamp']:
        o('s_waitcnt vmcnt(0)')
        stamp(8, 80)
        emit_stamps(80, 9, 90, 0x810000, 'K2')
    lab('K2_END'); o('s_endpgm')

def issue_offs():
    o(f's_lshl_b32 s{S_T}, s{S_SB}, 10'); o(f's_add_u32 s{S_T}, s{S_T}, {WS_OFFT}')
    o(f'buffer_load_dwordx4 v[{OF+4}:{OF+7}], v{OF}, s[{SWS}:{SWS+3}], s{S_T} offen offset:16')
    o(f'buffer_load_dwordx4 v[{OF}:{OF+3}], v{OF}, s[{SWS}:{SWS+3}], s{S_T} offen')

def prefill():
    a = T0
    for k in range(4): o(f'v_mov_b32 v{RK+k}, {DUMMY}'); o(f'v_mov_b32 v{RK+4+k}, 0')
    for k in range(3): o(f'ds_write_b128 v{a}, v[{RK}:{RK+3}] offset:{8192*k}')
    assert CNT > 24576 and (CNT - 24576) % 16 == 0
    o(f'v_cmp_gt_u32 vcc, {(CNT-24576)//16}, v0'); o('s_mov_b64 exec, vcc')
    o(f'ds_write_b128 v{a}, v[{RK}:{RK+3}] offset:24576')
    o(f'v_cmp_gt_u32 vcc, 33, v0'); o('s_mov_b64 exec, vcc')
    o(f'ds_write_b128 v{a}, v[{RK+4}:{RK+7}] offset:{CNT}')
    o('s_mov_b64 exec, -1')

def issue_recs():
    t = T0 + 4
    o(f'v_and_b32 v{VJ0}, 15, v0'); o(f'v_lshlrev_b32 v{VJ0}, 1, v{VJ0}')
    o(f'v_cmp_gt_u32 vcc, s{S_LIM}, v{VJ0}')
    o(f'v_add_u32 v{VJ0}, s{S_RB}, v{VJ0}')
    o(f'v_mov_b32 v{t}, 0x10000')
    o(f'v_cndmask_b32 v{VJ0}, v{t}, v{VJ0}, vcc')
    o(f'v_add_u32 v{VJ1}, 1, v{VJ0}')
    o(f's_lshl_b32 s{S_T}, s{S_RB}, 3')
    for i in range(8):
        m = MK + 4*i
        o(f'v_cmp_gt_u32_sdwa s[{m}:{m+1}], v{OF+i}, v{VJ0} src0_sel:WORD_1 src1_sel:DWORD')
        o(f'v_cmp_gt_u32_sdwa s[{m+2}:{m+3}], v{OF+i}, v{VJ1} src0_sel:WORD_1 src1_sel:DWORD')
        o(f'v_mad_u32_u16 v{t+(i&1)}, v{OF+i}, 8, v{VLB}')
        o(f's_mov_b64 exec, s[{m}:{m+1}]')
        o(f'buffer_load_dwordx4 v[{RD+4*i}:{RD+4*i+3}], v{t+(i&1)}, s[{SWS}:{SWS+3}], s{S_T} offen')
        o('s_mov_b64 exec, -1')
        if i < 7: o(f's_add_u32 s{S_T}, s{S_T}, {CH*8}')

def mf(D, s, B, first):
    o(f'v_mfma_f32_32x32x16_bf16 v[{D}:{D+15}], v[{A+4*s}:{A+4*s+3}], v[{B}:{B+3}], ' + ('0' if first else f'v[{D}:{D+15}]'))
def mf_s(D, s, B, first):
    return f'v_mfma_f32_32x32x16_bf16 v[{D}:{D+15}], v[{A+4*s}:{A+4*s+3}], v[{B}:{B+3}], ' + ('0' if first else f'v[{D}:{D+15}]')
def mfx_s(D, t):
    return f'v_mfma_f32_32x32x8_bf16 v[{D}:{D+15}], v[{AX}:{AX+1}], v[{BX+2*t}:{BX+2*t+1}], 0'
def dma_addr(q): return f'v_mad_u32_u16 v{R+q}, v{R+q}, s{S_128}, v{CD+q}'
def dma(q): return f'buffer_load_dwordx4 v{R+q}, s[{SX}:{SX+3}], 0 offen offset:{1024*q} lds'
def read_e(off): return [f's_mov_b64 exec, s[{S_HI}:{S_HI+1}]', f'ds_read_b32 v{AX}, v{PB} offset:{off}', 's_mov_b64 exec, -1']
def xadr(): return [f's_mov_b64 exec, s[{S_LO}:{S_LO+1}]', f'v_or_b32 v{XADR}, v{XW}, v{CX}', 's_mov_b64 exec, -1']
def tail_ops():
    tr = [f'v_rcp_f32 v{TD+k}, v{TD+k}' for k in range(4)]
    mu = [f'v_mul_f32 v{TN+k}, v{TN+k}, v{TD+k}' for k in range(4)]
    cv = [f'v_cvt_f64_f32 v[{F+2*k}:{F+2*k+1}], v{TN+k}' for k in range(4)]
    ad = [f'ds_add_f64 v{GA+(k&1)}, v[{F+2*k}:{F+2*k+1}] offset:{128+256*(k>>1)}' for k in range(4)]
    mx = [f'v_max3_f32 v{VMAX}, v{VMAX}, v{TD}, v{TD+1}', f'v_max3_f32 v{VMAX}, v{VMAX}, v{TD+2}, v{TD+3}']
    return tr, mu, cv, ad, mx

def mainloop():
    cm('pipeline prologue')
    R2 = F
    o(f'ds_read_b128 v[{R}:{R+3}], v{PA}')
    o(f'ds_read_b128 v[{R2}:{R2+3}], v{PA} offset:1024')
    o(f'ds_read_b32 v{XW}, v{PC}')
    for s in read_e(0): o(s)
    o(f's_mov_b32 m0, s{S_M0A}')
    o('s_waitcnt lgkmcnt(3)')
    for q in range(4): o(dma_addr(q)); o(dma(q))
    o(f's_mov_b32 m0, s{S_M0B}')
    o('s_waitcnt lgkmcnt(2)')
    for q in range(4):
        o(f'v_mad_u32_u16 v{R+q}, v{R2+q}, s{S_128}, v{CD+q}'); o(dma(q))
    o('s_waitcnt lgkmcnt(1)')
    for s in xadr(): o(s)
    for t in range(2): o(f'ds_read_b64_tr_b16 v[{BX+2*t}:{BX+2*t+1}], v{XADR} offset:{64*t}')
    o(f'ds_read_b128 v[{R}:{R+3}], v{PA} offset:2048')
    for k in range(4): o(f'v_mov_b32 v{TN+k}, 0'); o(f'v_mov_b32 v{TD+k}, 1.0')
    o(f'v_mov_b32 v{GA}, {DUMMY}'); o(f'v_mov_b32 v{GA+1}, {DUMMY}')
    o('s_waitcnt vmcnt(4)')
    for s in range(4): o(f'ds_read_b128 v[{A+4*s}:{A+4*s+3}], v{AR+s}')
    o('s_waitcnt lgkmcnt(4)')
    for t in range(2): o(mfx_s(Z[0]+16*t, t))
    for q in range(4): o(dma_addr(q))
    for s in range(4):
        o(f's_waitcnt lgkmcnt({3-s})')
        for t in range(2): mf(Z[0]+16*t, s, BZ+(t*4+s)*4, False)
    o(f's_mov_b32 m0, s{S_M0A}'); o('s_nop 0')
    for q in range(4): o(dma(q))
    o('s_nop 7')
    lab('K2_LOOP')
    for rho in range(2):
        iteration(rho)
        o(f's_sub_u32 s{S_N}, s{S_N}, 1')
        o(f's_cmp_eq_u32 s{S_N}, 0')
        if rho == 0: o('s_cbranch_scc1 K2_LOOPEND')
        else: o('s_cbranch_scc0 K2_LOOP')
    lab('K2_LOOPEND')
    tr, mu, cv, ad, mx = tail_ops()
    for s in mx + tr: o(s)
    o('s_waitcnt lgkmcnt(0)')
    o(f'v_lshl_add_u64 v[{GA}:{GA+1}], v[{GA}:{GA+1}], 0, v[{L8}:{L8+1}]')
    for s in mu + cv + ad: o(s)

def iteration(rho):
    cur, nxt = Z[rho], Z[rho ^ 1]
    ro, go = 1024*rho, 128*rho
    slot = (rho ^ 1) * 32768
    tr, mu, cv, ad, mx = tail_ops()
    mfl = []
    for s in range(4):
        for t in range(2): mfl.append(mf_s(H+16*t, s, BH+(t*4+s)*4, s == 0))
    for t in range(2): mfl.append(mfx_s(nxt+16*t, t))
    for s in range(4):
        for t in range(2): mfl.append(mf_s(nxt+16*t, s, BZ+(t*4+s)*4, False))
    ex = []
    for i in range(8):
        for t in range(2):
            for c in range(2): ex.append(f'v_exp_f32 v{cur+16*t+2*i+c}, v{cur+16*t+2*i+c}')
    chain = []
    for i in range(1, 8):
        for kind in range(3):
            for t in range(2): chain.append((t, i, kind))
    nsc = OPT['nsc'] // 2
    def ops(t, i, kind, w):
        z, h = cur+16*t, H+16*t
        last = i == 7
        def rg(a): return vr(a, 2) if w == 2 else None
        if w == 2:
            if kind == 0: return [f'v_pk_fma_f32 {rg(h)}, {rg(h)}, {rg(z+2*i)}, {rg(h)}']
            if kind == 1: return [f'v_pk_fma_f32 {rg(TN+2*t) if last else rg(h)}, {rg(h+2*i)}, {rg(z)}, {rg(h)}']
            return [f'v_pk_fma_f32 {rg(TD+2*t) if last else rg(z)}, {rg(z)}, {rg(z+2*i)}, {rg(z)}']
        assert not last
        if kind == 0: return [f'v_fmac_f32 v{h+c}, v{h+c}, v{z+2*i+c}' for c in range(2)]
        if kind == 1: return [f'v_fmac_f32 v{h+c}, v{h+2*i+c}, v{z+c}' for c in range(2)]
        return [f'v_fmac_f32 v{z+c}, v{z+c}, v{z+2*i+c}' for c in range(2)]
    sc_chain = sum((ops(*c, 1) for c in chain[:nsc]), [])
    pk = sum((ops(*c, 2) for c in chain[nsc:]), [])
    add1 = [f'v_add_f32 v{cur+16*t+c}, 1.0, v{cur+16*t+c}' for t in range(2) for c in range(2)]
    aread = [f'ds_read_b128 v[{A+4*s}:{A+4*s+3}], v{AR+s} offset:{slot}' for s in range(4)]
    gaps = [[] for _ in range(18)]
    pre = [[] for _ in range(18)]
    gaps[0] += [f'ds_read_b32 v{XW}, v{PC} offset:{128+go}'] + read_e(1024+ro) + [f'ds_read_b128 v[{R}:{R+3}], v{PA} offset:{3072+ro}']
    gaps[0] += mx + tr[0:2]
    gaps[1] += ['s_waitcnt vmcnt(4)', aread[0]] + tr[2:4] + mu[0:2]
    gaps[2] += ['s_waitcnt lgkmcnt(3)'] + xadr() + [f'ds_read_b64_tr_b16 v[{BX+2*t}:{BX+2*t+1}], v{XADR} offset:{64*t}' for t in range(2)]
    gaps[2] += ex[0:2] + [f'v_lshl_add_u64 v[{GA}:{GA+1}], v[{GA}:{GA+1}], 0, v[{L8}:{L8+1}]']
    gaps[3] += [aread[1]] + ex[2:4] + mu[2:4]
    gaps[4] += ex[4:6] + [cv[0], cv[1], ad[0], ad[1]]
    gaps[5] += [aread[2]] + ex[6:8] + [cv[2], cv[3], ad[2], ad[3], f'ds_read_b64 v[{GA}:{GA+1}], v{PD} offset:{go}']
    gaps[6] += ex[8:10] + add1[0:2]
    gaps[7] += [aread[3]] + ex[10:12] + add1[2:4]
    pre[8] += ['s_waitcnt lgkmcnt(8)']
    gaps[8] += ex[12:14] + [dma_addr(0), dma_addr(1), dma_addr(2)]
    gaps[9] += ex[14:16] + [dma_addr(3)]
    if rho == 1:
        gaps[9] += [f'v_lshl_add_u64 v[{PA}:{PB}], v[{PA}:{PB}], 0, s[{S_ADV1}:{S_ADV1+1}]',
                    f'v_lshl_add_u64 v[{PC}:{PD}], v[{PC}:{PD}], 0, s[{S_ADV2}:{S_ADV2+1}]']
    pre[12] += ['s_waitcnt lgkmcnt(7)']
    pre[14] += ['s_waitcnt lgkmcnt(4)']
    pre[16] += ['s_waitcnt lgkmcnt(0)', f's_mov_b32 m0, s{S_M0B if slot else S_M0A}']
    rest = ex[16:]
    k = 0
    for gi in range(10, 18):
        gaps[gi] += rest[2*(gi-10):2*(gi-10)+2]
        if gi >= 11:
            e_ = (len(sc_chain) * (gi - 10)) // 7
            gaps[gi] += sc_chain[k:e_]; k = e_
    gaps[16] += [dma(0), dma(1)]
    gaps[17] += [dma(2), dma(3)]
    for j in range(18):
        for s in pre[j]: o(s)
        o(mfl[j])
        for s in gaps[j]: o(s)
    if OPT['prio']: o('s_setprio 3')
    for s in pk: o(s)
    if OPT['prio']: o('s_setprio 0')

def safeloop():
    lab('K2_SAFE')
    o(f's_mov_b32 m0, s{S_M0A}')
    o(f's_mov_b32 s{S_T}, 1024'); o(f's_mov_b32 s{S_T2}, 128')
    lab('K2_SAFEL')
    o(f'ds_read_b128 v[{R}:{R+3}], v{PA}')
    o(f'ds_read_b32 v{XW}, v{PC}')
    for s in read_e(0): o(s)
    o(f'ds_read_b64 v[{GA}:{GA+1}], v{PD}')
    o('s_waitcnt lgkmcnt(0)')
    for q in range(4): o(dma_addr(q)); o(dma(q))
    for s in xadr(): o(s)
    for t in range(2): o(f'ds_read_b64_tr_b16 v[{BX+2*t}:{BX+2*t+1}], v{XADR} offset:{64*t}')
    o(f'v_lshl_add_u64 v[{GA}:{GA+1}], v[{GA}:{GA+1}], 0, v[{L8}:{L8+1}]')
    o(f'v_add_u32 v{PA}, s{S_T}, v{PA}'); o(f'v_add_u32 v{PB}, s{S_T}, v{PB}')
    o(f'v_add_u32 v{PC}, s{S_T2}, v{PC}'); o(f'v_add_u32 v{PD}, s{S_T2}, v{PD}')
    o('s_waitcnt vmcnt(0)')
    for s in range(4): o(f'ds_read_b128 v[{A+4*s}:{A+4*s+3}], v{AR+s}')
    o('s_waitcnt lgkmcnt(0)')
    z = Z[0]
    for t in range(2): o(mfx_s(z+16*t, t))
    for s in range(4):
        for t in range(2): mf(z+16*t, s, BZ+(t*4+s)*4, False)
    for s in range(4):
        for t in range(2): mf(H+16*t, s, BH+(t*4+s)*4, s == 0)
    o('s_nop 15')
    for k in range(32): o(f'v_exp_f32 v{z+k}, v{z+k}')
    for k in range(32): o(f'v_add_f32 v{z+k}, 1.0, v{z+k}')
    for k in range(32): o(f'v_rcp_f32 v{z+k}, v{z+k}')
    for i in range(8):
        for t in range(2):
            for c in range(2):
                r = 16*t + 2*i + c
                o(f'v_{"mul" if i == 0 else "fmac"}_f32 v{TN+2*t+c}, v{H+r}, v{z+r}')
    tr, mu, cv, ad, mx = tail_ops()
    for s in cv + ad: o(s)
    o(f's_sub_u32 s{S_N}, s{S_N}, 1'); o(f's_cmp_eq_u32 s{S_N}, 0'); o('s_cbranch_scc0 K2_SAFEL')

def epilogue():
    a, b, c = T0, T0+1, T0+2
    Y = 96
    o(f'v_lshrrev_b32 v{a}, 5, v0')
    o(f'v_mul_u32_u24 v{b}, 640, v{a}'); o(f'v_lshl_add_u32 v{b}, v{L8}, 1, v{b}'); o(f'v_add_u32 v{b}, {NODE0+128}, v{b}')
    for k in range(6): o(f'ds_read_b128 v[{Y+4*k}:{Y+4*k+3}], v{b} offset:{k*16*640}')
    o(f'ds_read_b128 v[{Y+24}:{Y+27}], v{b} offset:{6*16*640}')
    o(f's_mul_i32 s{S_T}, s{S_SB}, {NB*128}')
    o(f'v_lshl_add_u32 v{c}, v0, 2, s{S_T}')
    o(f's_mov_b32 s{S_T2}, 0x207')
    o(f's_mov_b32 s{MK}, {f2u(2.0**120):#x}')
    o(f'v_cmp_lt_f32 s[{MK+2}:{MK+3}], s{MK}, v{VMAX}')
    for k in range(7):
        if k == 6:
            o(f's_cmp_lg_u32 s{S_W}, 0'); o('s_cbranch_scc1 K2_EP_DONE')
        y = Y + 4*k
        o(f's_waitcnt lgkmcnt({6-k})')
        o(f'v_cvt_f32_f64 v{y}, v[{y}:{y+1}]'); o(f'v_cvt_f32_f64 v{y+1}, v[{y+2}:{y+3}]')
        o(f'v_mul_f32 v{y+2}, s{S_NL2}, v{y}'); o(f'v_mul_f32 v{y+3}, s{S_NL2}, v{y+1}')
        o(f'v_exp_f32 v{y+2}, v{y+2}'); o(f'v_exp_f32 v{y+3}, v{y+3}')
        o(f'v_add_f32 v{a}, v{y}, v{y+1}')
        o(f'v_add_f32 v{y+2}, 1.0, v{y+2}'); o(f'v_add_f32 v{y+3}, 1.0, v{y+3}')
        o(f'v_rcp_f32 v{y+2}, v{y+2}'); o(f'v_rcp_f32 v{y+3}, v{y+3}')
        o(f'v_cmp_class_f32 vcc, v{a}, s{S_T2}')
        o(f'v_mul_f32 v{y}, v{y}, v{y+2}'); o(f'v_mul_f32 v{y+1}, v{y+1}, v{y+3}')
        o(f's_or_b64 s[{MK+2}:{MK+3}], s[{MK+2}:{MK+3}], vcc')
        o(f'v_cvt_pk_bf16_f32 v{y}, v{y}, v{y+1}')
        o(f'buffer_store_dword v{y}, v{c}, s[{SOUT}:{SOUT+3}], 0 offen offset:{(k&1)*2048}')
        if k & 1: o(f'v_add_u32 v{c}, 4096, v{c}')
    lab('K2_EP_DONE')
    o(f'v_mov_b32 v{b}, {FLG+4}')
    o(f's_mov_b64 exec, s[{MK+2}:{MK+3}]')
    o(f'ds_write_b32 v{b}, v{ONE}')
    o('s_mov_b64 exec, -1')
    o('s_waitcnt lgkmcnt(0)')
    o('s_barrier')
    o(f'ds_read_b32 v{b}, v{b}')
    o('s_waitcnt lgkmcnt(0)')
    o(f'v_readfirstlane_b32 s{S_T}, v{b}')
    o(f's_andn2_b32 s{S_T}, s{S_T}, s{S_SAFE}')
    o('s_cbranch_scc0 K2_DONE')
    o(f's_mov_b32 s{S_SAFE}, 1')
    o('s_waitcnt vmcnt(0)')
    o('s_barrier')
    o('s_branch K2_TOP')
    lab('K2_DONE')

def kd(name, vgpr, sgpr):
    L.append(f'.amdhsa_kernel {name}')
    L.append(f'  .amdhsa_next_free_vgpr {vgpr}')
    L.append(f'  .amdhsa_next_free_sgpr {sgpr}')
    L.append(f'  .amdhsa_accum_offset {(vgpr+3)//4*4}')
    L.append('  .amdhsa_group_segment_fixed_size 0')
    L.append('  .amdhsa_kernarg_size 80')
    L.append('  .amdhsa_user_sgpr_count 2')
    L.append('  .amdhsa_user_sgpr_kernarg_segment_ptr 1')
    L.append('  .amdhsa_system_sgpr_workgroup_id_x 1')
    L.append('  .amdhsa_float_denorm_mode_32 3')
    L.append('.end_amdhsa_kernel')

hdr = open('cdna_kernels/' + NAME + '.s.ref').read().split('\n')
for h in hdr:
    if h.startswith(';') and '@launch' not in h and 'Override' not in h and 'grid=ceil' not in h: L.append(h)
L.append(f'; @launch kernel=part_kernel grid=(256,1,1) block=(832,1,1) lds={K1_LDS}')
L.append(f'; @launch kernel={NAME}_kernel grid=(256,1,1) block=(512,1,1) lds={K2_LDS}')
L.append('.amdgcn_target "amdgcn-amd-amdhsa--gfx950"')
L.append('.text')
L.append('.globl part_kernel'); L.append(f'.globl {NAME}_kernel')
k1(); k2()
L.append('.section .rodata,"a"'); L.append('.p2align 6')
kd('part_kernel', 48, 102)
L.append('.p2align 6')
kd(f'{NAME}_kernel', 256, 102)
out = OPT.get('out', 'cdna_kernels/' + NAME + '.s')
open(out, 'w').write('\n'.join(L) + '\n')
```

```python
import sys
NAME = "gather_scatter__edge_featured_mpnn_egc__graph"
N = 25000; E = 800000
NB = 98
CH = 3136
WS_OFFT = 0x700000
LOG2E = 1.4426950408889634
import struct
def f2u(f): return struct.unpack('<I', struct.pack('<f', f))[0]

OPT = dict(nsc=18, prio=1, k1sc='', stamp=0)
for a in sys.argv[1:]:
    if '=' in a:
        k, v = a.split('=', 1)
        try: v = int(v)
        except ValueError: pass
        OPT[k] = v

L = []
def o(s): L.append('    ' + s)
def lab(s): L.append(s + ':')
def cm(s): L.append('    ; ' + s)
def vr(a, n=1): return f'v{a}' if n == 1 else f'v[{a}:{a+n-1}]'
def sr(a, n=1): return f's{a}' if n == 1 else f's[{a}:{a+n-1}]'
def srd(d, b, size):
    o(f's_mov_b32 s{d}, s{b}'); o(f's_mov_b32 s{d+1}, s{b+1}')
    o(f's_mov_b32 s{d+2}, {size}'); o(f's_mov_b32 s{d+3}, 0x20000')
def scan(v, t):
    for sh in (1, 2, 4, 8):
        o('s_nop 1')
        o(f'v_add_u32_dpp v{v}, v{v}, v{v} row_shr:{sh} row_mask:0xf bank_mask:0xf bound_ctrl:0')
    o('s_nop 1')
    o(f'v_add_u32_dpp v{v}, v{v}, v{v} row_bcast:15 row_mask:0xa bank_mask:0xf')
    o('s_nop 1')
    o(f'v_add_u32_dpp v{v}, v{v}, v{v} row_bcast:31 row_mask:0xc bank_mask:0xf')
def stamp(idx, kbase):
    if not OPT['stamp']: return
    o(f's_memrealtime s[98:99]' if OPT['stamp']==1 else 's_memtime s[98:99]')
    o('s_waitcnt lgkmcnt(0)')
    o(f's_mov_b32 s{kbase+idx}, s98')

K1_LDS = 2048 + CH * 8
def k1():
    L.append('.p2align 8'); L.append('.type part_kernel,@function'); lab('part_kernel')
    o('s_cmp_ge_u32 s2, 256'); o('s_cbranch_scc1 K1_END')
    o('s_load_dwordx4 s[4:7], s[0:1], 8')
    o('s_load_dwordx2 s[8:9], s[0:1], 24')
    o('s_load_dwordx2 s[10:11], s[0:1], 72')
    stamp(0, 80)
    o('s_and_b32 s3, s2, 7'); o('s_lshl_b32 s3, s3, 5'); o('s_lshr_b32 s12, s2, 3'); o('s_add_u32 s3, s3, s12')
    o(f's_mul_i32 s12, s3, {CH//4}')
    o('v_add_u32 v1, s12, v0')
    o(f'v_cmp_gt_u32 vcc, {CH//4}, v0')
    o(f's_mov_b32 s13, {E//4}')
    o('v_cmp_gt_u32 s[14:15], s13, v1')
    o('s_and_b64 s[14:15], s[14:15], vcc')
    o('v_lshlrev_b32 v2, 4, v1'); o('v_lshlrev_b32 v3, 3, v1')
    o('v_lshlrev_b32 v4, 2, v0'); o('v_mov_b32 v5, 0')
    o('v_cmp_gt_u32 vcc, 256, v0')
    o('s_mov_b64 exec, vcc')
    o('ds_write_b32 v4, v5')
    o('s_waitcnt lgkmcnt(0)')
    srd(16, 8, E*4); srd(20, 6, E*4); srd(24, 4, E*2)
    o('s_mov_b64 exec, s[14:15]')
    o('buffer_load_dwordx4 v[8:11], v2, s[16:19], 0 offen')
    o('buffer_load_dwordx4 v[12:15], v2, s[20:23], 0 offen')
    o('buffer_load_dwordx2 v[16:17], v3, s[24:27], 0 offen')
    srd(28, 10, WS_OFFT + 256*1024)
    o(f's_mov_b32 s36, {-NB & 0xffffffff:#x}'); o('s_mov_b32 s37, 0xffff0000')
    o('v_mov_b32 v5, 1')
    o('s_barrier')
    o('s_waitcnt vmcnt(2)')
    stamp(1, 80)
    for i in range(4):
        o(f'v_mul_u32_u24 v{28+i}, 5350, v{8+i}')
        o(f'v_lshrrev_b32 v{28+i}, 19, v{28+i}')
        o(f'v_mad_i32_i24 v{21+2*i}, v{28+i}, s36, v{8+i}')
        o(f'v_lshlrev_b32 v{28+i}, 2, v{28+i}')
        o(f'ds_add_rtn_u32 v{32+i}, v{28+i}, v5')
    for i in range(4): o(f'v_lshlrev_b32 v{21+2*i}, 2, v{21+2*i}')
    o('s_mov_b64 exec, -1')
    o('v_and_b32 v6, 63, v0'); o('v_lshlrev_b32 v6, 4, v6')
    o('s_waitcnt lgkmcnt(0)')
    o('s_barrier')
    o('ds_read_b128 v[36:39], v6')
    o('s_waitcnt lgkmcnt(0)')
    o('v_add_u32 v41, v36, v37'); o('v_add_u32 v42, v41, v38'); o('v_add_u32 v43, v42, v39')
    o('v_mov_b32 v44, v43')
    scan(44, 45)
    o('v_sub_u32 v44, v44, v43')
    o('v_add_u32 v45, v44, v36'); o('v_add_u32 v46, v44, v41'); o('v_add_u32 v47, v44, v42')
    o('ds_write_b128 v6, v[44:47] offset:1024')
    o('s_mov_b64 exec, s[14:15]')
    for i in range(4): o(f'ds_read_b32 v{28+i}, v{28+i} offset:1024')
    o('s_waitcnt vmcnt(0)')
    o('v_lshl_or_b32 v20, v16, 16, v12'); o('v_and_or_b32 v22, v16, s37, v13')
    o('v_lshl_or_b32 v24, v17, 16, v14'); o('v_and_or_b32 v26, v17, s37, v15')
    for i in range(4):
        o(f's_waitcnt lgkmcnt({3})')
        o(f'v_add_lshl_u32 v{28+i}, v{28+i}, v{32+i}, 3')
        o(f'ds_write_b64 v{28+i}, v[{20+2*i}:{21+2*i}] offset:2048')
    o('s_mov_b64 exec, -1')
    o('v_readfirstlane_b32 s38, v0'); o('s_lshr_b32 s38, s38, 6')
    o('s_cmp_ge_u32 s38, 4'); o('s_cbranch_scc1 K1_NOOFF')
    o('v_lshlrev_b32 v6, 8, v6')
    o('s_lshl_b32 s39, s38, 10'); o('s_lshl_b32 s40, s3, 2'); o('s_add_u32 s39, s39, s40'); o(f's_add_u32 s39, s39, {WS_OFFT}')
    for i in range(4):
        o(f's_cmp_eq_u32 s38, {i}'); o(f's_cbranch_scc0 K1_OFF{i}')
        o(f'v_lshl_or_b32 v7, v{36+i}, 16, v{44+i}')
        lab(f'K1_OFF{i}')
    o(f'buffer_store_dword v7, v6, s[28:31], s39 offen {OPT["k1sc"]}')
    lab('K1_NOOFF')
    o('v_lshlrev_b32 v4, 4, v0')
    o(f's_mul_i32 s39, s3, {CH*8}')
    o(f's_add_u32 s40, s39, {CH*4}')
    o(f'v_cmp_gt_u32 vcc, {CH//4}, v0')
    o('s_waitcnt lgkmcnt(0)')
    o('s_barrier')
    o('s_mov_b64 exec, vcc')
    o('ds_read_b128 v[8:11], v4 offset:2048')
    o(f'ds_read_b128 v[12:15], v4 offset:{2048+CH*4}')
    o('s_waitcnt lgkmcnt(1)')
    o(f'buffer_store_dwordx4 v[8:11], v4, s[28:31], s39 offen {OPT["k1sc"]}')
    o('s_waitcnt lgkmcnt(0)')
    o(f'buffer_store_dwordx4 v[12:15], v4, s[28:31], s40 offen {OPT["k1sc"]}')
    if OPT['stamp']:
        stamp(2, 80)
        o('s_waitcnt vmcnt(0)')
        stamp(3, 80)
        emit_stamps(80, 4, 10, 0x800000, 'K1')
    lab('K1_END'); o('s_endpgm')

def emit_stamps(kbase, n, wsreg, off, tag):
    o('v_cmp_eq_u32 vcc, 0, v0'); o('s_mov_b64 exec, vcc'); o(f's_cbranch_execz {tag}_NOST')
    srd(92, wsreg, 0x1000000)
    o('s_lshl_b32 s96, s2, 6'); o(f's_add_u32 s96, s96, {off}')
    o('v_mov_b32 v1, 0')
    for i in range(n):
        o(f'v_mov_b32 v2, s{kbase+i}')
        o(f'buffer_store_dword v2, v1, s[92:95], s96 offen offset:{4*i}')
        o('s_waitcnt vmcnt(0)')
    lab(f'{tag}_NOST')

RECS = 0; NTILE = 216; GT = NTILE*128; CNT = GT + NTILE*16; FLG = CNT + 512
BASE = 31744; CROW = 32256; DUMMY = 32512; NODE0 = DUMMY + 640
RING0 = 96000; RING1 = RING0 + 32768; K2_LDS = RING1 + 32768
MAXG = (NTILE - 24) * 4
assert FLG + 16 <= BASE and NODE0 + NB*640 <= RING0 and K2_LDS <= 163840
V_L = 1; CD = 2; AR = 6; PA = 10; PB = 11; PC = 12; PD = 13; CX = 14; XADR = 15
L8 = 16; AX = 18; VMAX = 20; TRA = 21; VJ0 = 22; VJ1 = 23; VLB = 24; ONE = 25
T0 = 26
BZ = 32; BH = 64; Z = (96, 128); H = 160; A = 192
BX = 208; TN = 212; TD = 216; F = 220; R = 228; XW = 232; GA = 234
RD = 96; RK = 128; OF = 144; PW = 160; PD_ = 208; WT = 240
S_W = 3; SX = 8; SWS = 12; SOUT = 16; SG = 20; SV = 24; SU = 28
S_SB = 32; S_RB = 33; S_LIM = 34; S_SAFE = 35; S_MORE = 36; S_N = 37; S_T = 38; S_T2 = 39
S_M0A = 40; S_M0B = 41; S_ADV1 = 42; S_ADV2 = 44; S_128 = 46; S_NL2 = 47
MK = 48
S_LO = 4; S_HI = 6
P_ = 80
def k2():
    L.append('.p2align 8'); L.append(f'.type {NAME}_kernel,@function'); lab(f'{NAME}_kernel')
    o('s_cmp_ge_u32 s2, 256'); o('s_cbranch_scc1 K2_END')
    o(f's_mov_b32 s{S_SAFE}, {OPT.get("safe",0)}')
    if OPT.get('twice'): o('s_mov_b32 s97, 0')
    lab('K2_TOP')
    o('s_mov_b64 exec, -1')
    o(f's_load_dwordx2 s[48:49], s[0:1], 0')
    o(f's_load_dwordx8 s[52:59], s[0:1], 32')
    o(f's_load_dwordx2 s[50:51], s[0:1], 72')
    stamp(0, 80)
    o(f's_and_b32 s{S_SB}, s2, 7'); o(f's_lshl_b32 s{S_SB}, s{S_SB}, 5'); o(f's_lshr_b32 s{S_T}, s2, 3'); o(f's_add_u32 s{S_SB}, s{S_SB}, s{S_T}')
    o(f'v_readfirstlane_b32 s{S_W}, v0'); o(f's_lshr_b32 s{S_W}, s{S_W}, 6')
    o(f's_mov_b32 s{S_RB}, 0'); o(f's_mov_b32 s{S_LIM}, 32')
    o(f's_mov_b32 s{S_LO}, -1'); o(f's_mov_b32 s{S_LO+1}, 0'); o(f's_mov_b32 s{S_HI}, 0'); o(f's_mov_b32 s{S_HI+1}, -1')
    o(f's_mov_b32 s{S_ADV1}, 2048'); o(f's_mov_b32 s{S_ADV1+1}, 2048'); o(f's_mov_b32 s{S_ADV2}, 256'); o(f's_mov_b32 s{S_ADV2+1}, 256')
    o(f's_mov_b32 s{S_128}, 128'); o(f's_mov_b32 s{S_NL2}, {f2u(-LOG2E):#x}')
    o(f's_lshl_b32 s{S_M0A}, s{S_W}, 12'); o(f's_add_u32 s{S_M0A}, s{S_M0A}, {RING0}'); o(f's_add_u32 s{S_M0B}, s{S_M0A}, 32768')
    o(f'v_and_b32 v{V_L}, 63, v0')
    a, b, c, d, e, f = range(T0, T0+6)
    cm('segment lane constants')
    o(f'v_lshrrev_b32 v{a}, 4, v0')
    o(f'v_lshlrev_b32 v{OF}, 5, v{a}')
    o(f'v_and_b32 v{b}, 15, v0')
    o(f'v_lshlrev_b32 v{VLB}, 4, v{b}')
    o(f's_mov_b32 s{S_T}, {8*CH*8}')
    o(f'v_mad_u32_u24 v{VLB}, v{a}, s{S_T}, v{VLB}')
    cm('DMA constants')
    o(f'v_lshrrev_b32 v{a}, 4, v{V_L}'); o(f'v_and_b32 v{b}, 7, v{V_L}'); o(f'v_xor_b32 v{a}, v{a}, v{b}')
    o(f'v_lshlrev_b32 v{a}, 4, v{a}'); o(f'v_xor_b32 v{b}, 64, v{a}')
    o(f'v_add_u32 v{CD}, 3072, v{a}'); o(f'v_add_u32 v{CD+1}, 2048, v{b}'); o(f'v_add_u32 v{CD+2}, 1024, v{a}'); o(f'v_mov_b32 v{CD+3}, v{b}')
    o('s_waitcnt lgkmcnt(0)')
    srd(SWS, 50, WS_OFFT + 256*1024)
    issue_offs()
    srd(SG, 56, 129*128); srd(SV, 54, 8192); srd(SU, 52, 8192); srd(SOUT, 58, N*128)
    o(f's_sub_u32 s{SX}, s48, 3072'); o(f's_subb_u32 s{SX+1}, s49, 0'); o(f's_mov_b32 s{SX+2}, {N*128+3072}'); o(f's_mov_b32 s{SX+3}, 0x20000')
    if OPT['stamp']: o('s_mov_b64 s[90:91], s[50:51]')
    cm('weights')
    o(f'v_lshlrev_b32 v{a}, 4, v0')
    o(f's_movk_i32 s{S_T}, 8192')
    o(f'buffer_load_dwordx4 v[{WT}:{WT+3}], v{a}, s[{SG}:{SG+3}], s{S_T} offen')
    o(f'v_lshlrev_b32 v{b}, 4, v{V_L}')
    o(f's_movk_i32 s{S_T}, 16384')
    o(f'buffer_load_dwordx4 v[{WT+4}:{WT+7}], v{b}, s[{SG}:{SG+3}], s{S_T} offen')
    o(f's_lshl_b32 s{S_T}, s{S_W}, 10'); o(f's_add_u32 s{S_T}, s{S_T}, {RING1}')
    o(f's_mov_b32 m0, s{S_T}'); o('s_nop 0')
    o(f'buffer_load_dwordx4 v{a}, s[{SG}:{SG+3}], 0 offen lds')
    o(f's_add_u32 m0, s{S_T}, 16384'); o('s_nop 0')
    o(f'buffer_load_dwordx4 v{a}, s[{SV}:{SV+3}], 0 offen lds')
    o(f's_add_u32 m0, s{S_T}, 24576'); o('s_nop 0')
    o(f'buffer_load_dwordx4 v{a}, s[{SU}:{SU+3}], 0 offen lds')
    cm('own x rows -> ring slot 0')
    o(f's_and_b32 s{S_T}, s{S_W}, 3'); o(f's_lshl_b32 s{S_T}, s{S_T}, 5'); o(f's_mul_i32 s{S_T2}, s{S_SB}, {NB}'); o(f's_add_u32 s{S_T}, s{S_T}, s{S_T2}')
    o(f'v_lshrrev_b32 v{c}, 3, v{V_L}'); o(f'v_lshl_add_u32 v{c}, v{c}, 2, s{S_T}')
    o(f's_mov_b32 m0, s{S_M0A}')
    for q in range(4):
        o(f'v_lshl_add_u32 v{d}, v{c}, 7, v{CD+q}')
        if q: o(f'v_add_u32 v{d}, {128*q}, v{d}')
        o(f'buffer_load_dwordx4 v{d}, s[{SX}:{SX+3}], 0 offen offset:{1024*q} lds')
    prefill()
    cm('zero dummy XA row')
    o(f'v_cmp_gt_u32 vcc, 8, v0'); o('s_mov_b64 exec, vcc')
    o(f'ds_write_b128 v{a}, v[{RK+4}:{RK+7}] offset:{DUMMY}')
    o('s_mov_b64 exec, -1')
    cm('main loop lane constants')
    x, y, v_, u0, u1, hh = RK+8, RK+9, RK+10, RK+11, RK+12, RK+13
    g, gb, t1 = RK+14, RK+15, c
    o(f'v_and_b32 v{x}, 1, v{V_L}'); o(f'v_bfe_u32 v{y}, v{V_L}, 1, 1'); o(f'v_bfe_u32 v{v_}, v{V_L}, 2, 1')
    o(f'v_bfe_u32 v{u0}, v{V_L}, 3, 1'); o(f'v_bfe_u32 v{u1}, v{V_L}, 4, 1'); o(f'v_lshrrev_b32 v{hh}, 5, v{V_L}')
    o(f'v_lshl_add_u32 v{g}, v{v_}, 1, v{x}')
    o(f'v_xor_b32 v{gb}, v{v_}, v{u0}'); o(f'v_xor_b32 v{gb}, v{gb}, v{u1}')
    o(f'v_lshl_add_u32 v{gb}, v{gb}, 1, v{y}')
    o(f'v_lshl_add_u32 v{u0}, v{g}, 1, v{u1}')
    o(f'v_lshl_add_u32 v{PB}, v{u0}, 2, v{gb}')
    o(f'v_lshlrev_b32 v{PB}, 2, v{PB}')
    o(f'v_lshl_add_u32 v{u0}, v{gb}, 3, v{u0}')
    o(f'v_lshl_add_u32 v{u0}, v{u0}, 7, s{S_M0A}')
    o(f'v_lshl_add_u32 v{u1}, v{y}, 2, v{g}')
    o(f'v_xor_b32 v{u1}, v{u1}, v{hh}')
    for s in range(4):
        o(f'v_xor_b32 v{t1}, {2*s}, v{u1}')
        o(f'v_lshl_add_u32 v{AR+s}, v{t1}, 4, v{u0}')
    o(f'v_lshlrev_b32 v{t1}, 4, v{x}'); o(f'v_mov_b32 v{d}, 0x3f80'); o(f'v_lshlrev_b32 v{t1}, v{t1}, v{d}')
    o(f'v_cmp_eq_u32 vcc, 0, v{v_}'); o('s_nop 1')
    o(f'v_cndmask_b32 v{AX}, 0, v{t1}, vcc')
    o(f'v_sub_u32 v{AX+1}, v{t1}, v{AX}')
    o(f'v_cndmask_b32 v{AX+1}, v{AX+1}, 0, s[{S_HI}:{S_HI+1}]')
    o(f'v_bfe_u32 v{t1}, v{V_L}, 4, 1'); o(f'v_lshlrev_b32 v{t1}, 5, v{t1}'); o(f'v_and_b32 v{d}, 3, v{V_L}')
    o(f'v_lshl_add_u32 v{CX}, v{d}, 3, v{t1}')
    o(f'v_bfe_u32 v{d}, v{V_L}, 2, 2')
    o(f'v_lshlrev_b32 v{PC}, 2, v{d}')
    o(f'v_lshl_add_u32 v{e}, v{hh}, 3, v{d}'); o(f'v_lshl_add_u32 v{TRA}, v{e}, 7, v{CX}'); o(f'v_add_u32 v{TRA}, {RING1}, v{TRA}')
    o(f'v_cmp_eq_u32 vcc, 1, v{d}'); o(f'v_mov_b32 v{e}, {DUMMY}'); o(f'v_mov_b32 v{f}, {CROW}')
    o(f'v_cndmask_b32 v{XADR}, v{e}, v{f}, vcc'); o(f'v_add_u32 v{XADR}, v{XADR}, v{CX}')
    o(f'v_and_b32 v{L8}, 31, v{V_L}'); o(f'v_lshlrev_b32 v{L8}, 3, v{L8}'); o(f'v_mov_b32 v{L8+1}, v{L8}')
    o(f'v_mov_b32 v{VMAX}, 0'); o(f'v_mov_b32 v{ONE}, 1')
    o('s_waitcnt vmcnt(9)')
    stamp(1, 80)
    issue_recs()
    cm('scale W_B and c')
    o('s_waitcnt vmcnt(15)')
    o(f's_mov_b32 s{S_T}, 0xffff0000')
    for k in range(8):
        o(f'v_lshlrev_b32 v{WT+8}, 16, v{WT+k}'); o(f'v_and_b32 v{WT+9}, s{S_T}, v{WT+k}')
        o(f'v_mul_f32 v{WT+8}, s{S_NL2}, v{WT+8}'); o(f'v_mul_f32 v{WT+9}, s{S_NL2}, v{WT+9}')
        o(f'v_cvt_pk_bf16_f32 v{WT+k}, v{WT+8}, v{WT+9}')
    o(f'v_add_u32 v{a}, {RING1+8192}, v{a}')
    o(f'ds_write_b128 v{a}, v[{WT}:{WT+3}]')
    o(f'v_cmp_gt_u32 vcc, 8, v0'); o('s_mov_b64 exec, vcc')
    o(f'ds_write_b128 v{b}, v[{WT+4}:{WT+7}] offset:{CROW}')
    o('s_mov_b64 exec, -1')
    o('s_waitcnt vmcnt(8) lgkmcnt(0)')
    o('s_barrier')
    stamp(2, 80)
    cm('XA / XU')
    o(f's_lshr_b32 s{S_T}, s{S_W}, 2'); o(f's_mul_i32 s{S_T}, s{S_T}, 24576')
    o(f'v_add_u32 v{a}, s{S_T}, v{TRA}')
    for s in range(4): o(f'ds_read_b128 v[{A+4*s}:{A+4*s+3}], v{AR+s}')
    for t in range(2):
        for s in range(4):
            for hf in range(2):
                r = PW + (t*4+s)*4 + 2*hf
                o(f'ds_read_b64_tr_b16 v[{r}:{r+1}], v{a} offset:{s*2048+hf*512+t*64}')
        o(f's_waitcnt lgkmcnt(0)')
        for s in range(4):
            D = PD_ + 16*t; r = PW + (t*4+s)*4
            o(f'v_mfma_f32_32x32x16_bf16 v[{D}:{D+15}], v[{A+4*s}:{A+4*s+3}], v[{r}:{r+3}], ' + ('0' if s == 0 else f'v[{D}:{D+15}]'))
    cm('B operands')
    n = 0
    for mat, base in ((8192, BZ), (16384, BH)):
        for t in range(2):
            for s in range(4):
                for hf in range(2):
                    r = base + (t*4+s)*4 + 2*hf
                    o(f'ds_read_b64_tr_b16 v[{r}:{r+1}], v{TRA} offset:{mat+s*2048+hf*512+t*64}')
                    n += 1
                    if n % 8 == 0: o('s_waitcnt lgkmcnt(7)')
    o(f's_and_b32 s{S_T}, s{S_W}, 3'); o(f's_mul_i32 s{S_T2}, s{S_T}, {32*640}'); o(f's_add_u32 s{S_T2}, s{S_T2}, {NODE0}')
    o(f'v_lshrrev_b32 v{c}, 5, v{V_L}')
    o(f'v_mul_u32_u24 v{a}, {18*640}, v{c}'); o(f'v_mul_u32_u24 v{b}, {14*640}, v{c}')
    o(f'v_add_u32 v{a}, s{S_T2}, v{a}'); o(f'v_add_u32 v{b}, s{S_T2}, v{b}'); o(f'v_add_u32 v{b}, {2*640}, v{b}')
    def rowoff(r):
        x_, y_, u0_, u1_ = r & 1, (r >> 1) & 1, (r >> 2) & 1, r >> 3
        return (a if (u0_ ^ u1_) == 0 else b), (8*x_ + 4*u1_ + y_) * 640
    o(f's_cmp_ge_u32 s{S_W}, 4'); o('s_cbranch_scc1 K2_XU')
    o(f'v_lshrrev_b32 v{c}, 2, v{L8}'); o(f'v_add_u32 v{a}, v{a}, v{c}'); o(f'v_add_u32 v{b}, v{b}, v{c}')
    for k in range(32): o(f'v_mul_f32 v{PD_+k}, s{S_NL2}, v{PD_+k}')
    for k in range(16): o(f'v_cvt_pk_bf16_f32 v{PD_+2*k}, v{PD_+2*k}, v{PD_+2*k+1}')
    o(f's_cmp_eq_u32 s{S_T}, 3'); o('s_cbranch_scc1 K2_XA3')
    n = 0
    for t in range(2):
        for r in range(16):
            br, off = rowoff(r)
            o(f'ds_write_b16{"_d16_hi" if r & 1 else ""} v{br}, v{PD_+16*t+(r&~1)} offset:{off+64*t}')
            n += 1
            if n % 8 == 0: o('s_waitcnt lgkmcnt(7)')
    o('s_branch K2_HIST')
    lab('K2_XA3')
    o(f's_mov_b64 exec, s[{S_LO}:{S_LO+1}]')
    for t in range(2):
        for r in (0, 2):
            br, off = rowoff(r)
            o(f'ds_write_b16 v{br}, v{PD_+16*t+r} offset:{off+64*t}')
    o('s_mov_b64 exec, -1')
    o('s_branch K2_HIST')
    lab('K2_XU')
    o(f'v_add_u32 v{a}, v{a}, v{L8}'); o(f'v_add_u32 v{b}, v{b}, v{L8}')
    o(f's_cmp_eq_u32 s{S_T}, 3'); o('s_cbranch_scc1 K2_XU3')
    n = 0
    for t in range(2):
        for r in range(16):
            br, off = rowoff(r); tmp = PW + 2*r
            o(f'v_cvt_f64_f32 v[{tmp}:{tmp+1}], v{PD_+16*t+r}')
            o(f'ds_write_b64 v{br}, v[{tmp}:{tmp+1}] offset:{off+128+256*t}')
            n += 1
            if n % 8 == 0: o('s_waitcnt lgkmcnt(7)')
    o('s_branch K2_HIST')
    lab('K2_XU3')
    o(f's_mov_b64 exec, s[{S_LO}:{S_LO+1}]')
    for t in range(2):
        for r in (0, 2):
            br, off = rowoff(r); tmp = PW + 2*r + 8*t
            o(f'v_cvt_f64_f32 v[{tmp}:{tmp+1}], v{PD_+16*t+r}')
            o(f'ds_write_b64 v{br}, v[{tmp}:{tmp+1}] offset:{off+128+256*t}')
    o('s_mov_b64 exec, -1')
    o('s_branch K2_HIST')

    lab('K2_ROUND')
    o(f'v_lshrrev_b32 v{a}, 4, v0'); o(f'v_lshlrev_b32 v{OF}, 5, v{a}')
    issue_offs()
    o(f'v_lshlrev_b32 v{a}, 4, v0')
    prefill()
    o('s_waitcnt vmcnt(0)')
    issue_recs()
    o('s_waitcnt lgkmcnt(0)')
    o('s_barrier')

    lab('K2_HIST')
    stamp(3, 80)
    o('s_waitcnt lgkmcnt(0)')
    for i in range(8):
        o(f's_waitcnt vmcnt({7-i})')
        for k in range(2):
            m = MK + 4*i + 2*k
            o(f's_mov_b64 exec, s[{m}:{m+1}]')
            o(f'ds_add_rtn_u32 v{RK+2*i+k}, v{RD+4*i+2*k+1}, v{ONE} offset:{CNT}')
        if i == 6: o('s_waitcnt lgkmcnt(8)')
    o('s_mov_b64 exec, -1')
    o(f'v_max3_u32 v{a}, v{OF}, v{OF+1}, v{OF+2}'); o(f'v_max3_u32 v{a}, v{a}, v{OF+3}, v{OF+4}')
    o(f'v_max3_u32 v{a}, v{a}, v{OF+5}, v{OF+6}'); o(f'v_max_u32 v{a}, v{a}, v{OF+7}')
    o(f'v_lshrrev_b32 v{a}, 16, v{a}')
    o(f's_add_u32 s{S_T}, s{S_RB}, s{S_LIM}')
    o(f'v_cmp_lt_u32 vcc, s{S_T}, v{a}')
    o(f'v_mov_b32 v{b}, {FLG}')
    o('s_mov_b64 exec, vcc')
    o(f'ds_write_b32 v{b}, v{ONE}')
    o('s_mov_b64 exec, -1')
    o(f'v_lshlrev_b32 v{c}, 3, v{V_L}')
    o('s_waitcnt lgkmcnt(0)')
    o('s_barrier')
    stamp(4, 80)
    o(f'ds_read_b64 v[{e}:{f}], v{c} offset:{CNT}')
    o(f'ds_read_b32 v{b}, v{b}')
    o(f'v_and_b32 v{WT}, 0x1fc, v0')
    o(f'ds_read_b32 v{WT+1}, v{WT} offset:{CNT}')
    o('s_waitcnt lgkmcnt(1)')
    o(f'v_add_u32 v{e}, 7, v{e}'); o(f'v_add_u32 v{f}, 7, v{f}')
    o(f'v_lshrrev_b32 v{e}, 3, v{e}'); o(f'v_lshrrev_b32 v{f}, 3, v{f}')
    o(f'v_readfirstlane_b32 s{S_MORE}, v{b}')
    o(f'v_add_u32 v{f}, v{e}, v{f}'); o(f'v_mov_b32 v{a}, v{f}')
    scan(a, b)
    o('s_nop 0')
    o(f'v_readlane_b32 s{S_T}, v{a}, 63')
    o(f'v_sub_u32 v{a}, v{a}, v{f}')
    o(f'v_lshlrev_b32 v{a}, 5, v{a}'); o(f'v_lshl_add_u32 v{b}, v{e}, 5, v{a}')
    o(f's_cmp_gt_u32 s{S_T}, {MAXG}'); o('s_cbranch_scc0 K2_FITS')
    o(f's_mov_b32 s{S_LIM}, 16')
    o('s_waitcnt lgkmcnt(0)')
    o('s_barrier')
    o('s_branch K2_ROUND')
    lab('K2_FITS')
    o(f'ds_write_b64 v{c}, v[{a}:{b}] offset:{BASE}')
    o(f'ds_read_b32 v{WT+2}, v{WT} offset:{BASE}')
    for half in range(2):
        for j in range(8*half, 8*half+8):
            m = MK + 2*j
            o(f's_mov_b64 exec, s[{m}:{m+1}]')
            o(f'ds_read_b32 v{RD+2*j+1}, v{RD+2*j+1} offset:{BASE}')
        for j in range(8*half, 8*half+8):
            m = MK + 2*j
            o(f's_mov_b64 exec, s[{m}:{m+1}]')
            o('s_waitcnt lgkmcnt(7)')
            o(f'v_lshl_add_u32 v{RD+2*j+1}, v{RK+j}, 2, v{RD+2*j+1}')
            o(f'ds_write_b32 v{RD+2*j+1}, v{RD+2*j}')
        if half == 0: o('s_waitcnt lgkmcnt(7)')
    o('s_mov_b64 exec, -1')
    cm('group table')
    o(f'v_add_u32 v{WT+1}, 7, v{WT+1}'); o(f'v_lshrrev_b32 v{WT+1}, 3, v{WT+1}')
    o(f'v_lshrrev_b32 v{WT+2}, 3, v{WT+2}')
    o(f'v_lshl_add_u32 v{WT+1}, v{WT+1}, 2, v{WT+2}')
    o(f'v_and_b32 v{WT+3}, 3, v0'); o(f'v_lshl_add_u32 v{WT+2}, v{WT+3}, 2, v{WT+2}')
    o(f'v_mul_u32_u24 v{WT}, 160, v{WT}'); o(f'v_add_u32 v{WT}, {NODE0}, v{WT}')
    lab('K2_GT')
    o(f'v_cmp_lt_u32 vcc, v{WT+2}, v{WT+1}')
    o('s_and_b64 exec, exec, vcc'); o('s_cbranch_execz K2_GTD')
    o(f'ds_write_b32 v{WT+2}, v{WT} offset:{GT}')
    o(f'v_add_u32 v{WT+2}, 16, v{WT+2}')
    o('s_waitcnt lgkmcnt(8)')
    o('s_branch K2_GT')
    lab('K2_GTD')
    o('s_mov_b64 exec, -1')
    o(f's_add_u32 s{S_T}, s{S_T}, 3'); o(f's_lshr_b32 s{S_T}, s{S_T}, 2')
    o(f's_add_u32 s{S_N}, s{S_T}, 7'); o(f's_sub_u32 s{S_N}, s{S_N}, s{S_W}'); o(f's_lshr_b32 s{S_N}, s{S_N}, 3')
    o(f's_lshl_b32 s{S_T}, s{S_W}, 7'); o(f's_lshl_b32 s{S_T2}, s{S_W}, 4'); o(f's_add_u32 s{S_T2}, s{S_T2}, {GT}')
    o(f'v_lshrrev_b32 v{PA}, 3, v{V_L}'); o(f'v_lshl_add_u32 v{PA}, v{PA}, 4, s{S_T}')
    o(f'v_and_b32 v{PB}, 127, v{PB}'); o(f'v_add_u32 v{PB}, s{S_T}, v{PB}')
    o(f'v_and_b32 v{PC}, 15, v{PC}'); o(f'v_add_u32 v{PC}, s{S_T2}, v{PC}')
    o(f'v_lshrrev_b32 v{PD}, 5, v{V_L}'); o(f'v_lshl_add_u32 v{PD}, v{PD}, 3, s{S_T2}')
    o('s_waitcnt lgkmcnt(0)')
    o('s_barrier')
    stamp(5, 80)
    o(f's_cmp_eq_u32 s{S_N}, 0'); o('s_cbranch_scc1 K2_LOOPDONE')
    o(f's_cmp_lg_u32 s{S_SAFE}, 0'); o('s_cbranch_scc1 K2_SAFE')
    mainloop()
    o('s_branch K2_LOOPDONE')
    safeloop()
    lab('K2_LOOPDONE')
    o('s_waitcnt vmcnt(0) lgkmcnt(0)')
    stamp(6, 80)
    o('s_barrier')
    o(f's_cmp_eq_u32 s{S_MORE}, 0'); o('s_cbranch_scc1 K2_FIN')
    o(f's_add_u32 s{S_RB}, s{S_RB}, s{S_LIM}')
    o('s_branch K2_ROUND')
    lab('K2_FIN')
    stamp(7, 80)
    epilogue()
    if OPT['stamp']:
        o('s_waitcnt vmcnt(0)')
        stamp(8, 80)
        emit_stamps(80, 9, 90, 0x810000, 'K2')
    lab('K2_END'); o('s_endpgm')

def issue_offs():
    o(f's_lshl_b32 s{S_T}, s{S_SB}, 10'); o(f's_add_u32 s{S_T}, s{S_T}, {WS_OFFT}')
    o(f'buffer_load_dwordx4 v[{OF+4}:{OF+7}], v{OF}, s[{SWS}:{SWS+3}], s{S_T} offen offset:16')
    o(f'buffer_load_dwordx4 v[{OF}:{OF+3}], v{OF}, s[{SWS}:{SWS+3}], s{S_T} offen')

def prefill():
    a = T0
    for k in range(4): o(f'v_mov_b32 v{RK+k}, {DUMMY}'); o(f'v_mov_b32 v{RK+4+k}, 0')
    for k in range(3): o(f'ds_write_b128 v{a}, v[{RK}:{RK+3}] offset:{8192*k}')
    assert CNT > 24576 and (CNT - 24576) % 16 == 0
    o(f'v_cmp_gt_u32 vcc, {(CNT-24576)//16}, v0'); o('s_mov_b64 exec, vcc')
    o(f'ds_write_b128 v{a}, v[{RK}:{RK+3}] offset:24576')
    o(f'v_cmp_gt_u32 vcc, 33, v0'); o('s_mov_b64 exec, vcc')
    o(f'ds_write_b128 v{a}, v[{RK+4}:{RK+7}] offset:{CNT}')
    o('s_mov_b64 exec, -1')

def issue_recs():
    t = T0 + 4
    o(f'v_and_b32 v{VJ0}, 15, v0'); o(f'v_lshlrev_b32 v{VJ0}, 1, v{VJ0}')
    o(f'v_cmp_gt_u32 vcc, s{S_LIM}, v{VJ0}')
    o(f'v_add_u32 v{VJ0}, s{S_RB}, v{VJ0}')
    o(f'v_mov_b32 v{t}, 0x10000')
    o(f'v_cndmask_b32 v{VJ0}, v{t}, v{VJ0}, vcc')
    o(f'v_add_u32 v{VJ1}, 1, v{VJ0}')
    o(f's_lshl_b32 s{S_T}, s{S_RB}, 3')
    for i in range(8):
        m = MK + 4*i
        o(f'v_cmp_gt_u32_sdwa s[{m}:{m+1}], v{OF+i}, v{VJ0} src0_sel:WORD_1 src1_sel:DWORD')
        o(f'v_cmp_gt_u32_sdwa s[{m+2}:{m+3}], v{OF+i}, v{VJ1} src0_sel:WORD_1 src1_sel:DWORD')
        o(f'v_mad_u32_u16 v{t+(i&1)}, v{OF+i}, 8, v{VLB}')
        o(f's_mov_b64 exec, s[{m}:{m+1}]')
        o(f'buffer_load_dwordx4 v[{RD+4*i}:{RD+4*i+3}], v{t+(i&1)}, s[{SWS}:{SWS+3}], s{S_T} offen')
        o('s_mov_b64 exec, -1')
        if i < 7: o(f's_add_u32 s{S_T}, s{S_T}, {CH*8}')

def mf(D, s, B, first):
    o(f'v_mfma_f32_32x32x16_bf16 v[{D}:{D+15}], v[{A+4*s}:{A+4*s+3}], v[{B}:{B+3}], ' + ('0' if first else f'v[{D}:{D+15}]'))
def mf_s(D, s, B, first):
    return f'v_mfma_f32_32x32x16_bf16 v[{D}:{D+15}], v[{A+4*s}:{A+4*s+3}], v[{B}:{B+3}], ' + ('0' if first else f'v[{D}:{D+15}]')
def mfx_s(D, t):
    return f'v_mfma_f32_32x32x8_bf16 v[{D}:{D+15}], v[{AX}:{AX+1}], v[{BX+2*t}:{BX+2*t+1}], 0'
def dma_addr(q): return f'v_mad_u32_u16 v{R+q}, v{R+q}, s{S_128}, v{CD+q}'
def dma(q): return f'buffer_load_dwordx4 v{R+q}, s[{SX}:{SX+3}], 0 offen offset:{1024*q} lds'
def read_e(off): return [f's_mov_b64 exec, s[{S_HI}:{S_HI+1}]', f'ds_read_b32 v{AX}, v{PB} offset:{off}', 's_mov_b64 exec, -1']
def xadr(): return [f's_mov_b64 exec, s[{S_LO}:{S_LO+1}]', f'v_or_b32 v{XADR}, v{XW}, v{CX}', 's_mov_b64 exec, -1']
def tail_ops():
    tr = [f'v_rcp_f32 v{TD+k}, v{TD+k}' for k in range(4)]
    mu = [f'v_mul_f32 v{TN+k}, v{TN+k}, v{TD+k}' for k in range(4)]
    cv = [f'v_cvt_f64_f32 v[{F+2*k}:{F+2*k+1}], v{TN+k}' for k in range(4)]
    ad = [f'ds_add_f64 v{GA+(k&1)}, v[{F+2*k}:{F+2*k+1}] offset:{128+256*(k>>1)}' for k in range(4)]
    mx = [f'v_max3_f32 v{VMAX}, v{VMAX}, v{TD}, v{TD+1}', f'v_max3_f32 v{VMAX}, v{VMAX}, v{TD+2}, v{TD+3}']
    return tr, mu, cv, ad, mx

def mainloop():
    cm('pipeline prologue')
    R2 = F
    o(f'ds_read_b128 v[{R}:{R+3}], v{PA}')
    o(f'ds_read_b128 v[{R2}:{R2+3}], v{PA} offset:1024')
    o(f'ds_read_b32 v{XW}, v{PC}')
    for s in read_e(0): o(s)
    o(f's_mov_b32 m0, s{S_M0A}')
    o('s_waitcnt lgkmcnt(3)')
    for q in range(4): o(dma_addr(q)); o(dma(q))
    o(f's_mov_b32 m0, s{S_M0B}')
    o('s_waitcnt lgkmcnt(2)')
    for q in range(4):
        o(f'v_mad_u32_u16 v{R+q}, v{R2+q}, s{S_128}, v{CD+q}'); o(dma(q))
    o('s_waitcnt lgkmcnt(1)')
    for s in xadr(): o(s)
    for t in range(2): o(f'ds_read_b64_tr_b16 v[{BX+2*t}:{BX+2*t+1}], v{XADR} offset:{64*t}')
    o(f'ds_read_b128 v[{R}:{R+3}], v{PA} offset:2048')
    for k in range(4): o(f'v_mov_b32 v{TN+k}, 0'); o(f'v_mov_b32 v{TD+k}, 1.0')
    o(f'v_mov_b32 v{GA}, {DUMMY}'); o(f'v_mov_b32 v{GA+1}, {DUMMY}')
    o('s_waitcnt vmcnt(4)')
    for s in range(4): o(f'ds_read_b128 v[{A+4*s}:{A+4*s+3}], v{AR+s}')
    o('s_waitcnt lgkmcnt(4)')
    for t in range(2): o(mfx_s(Z[0]+16*t, t))
    for q in range(4): o(dma_addr(q))
    for s in range(4):
        o(f's_waitcnt lgkmcnt({3-s})')
        for t in range(2): mf(Z[0]+16*t, s, BZ+(t*4+s)*4, False)
    o(f's_mov_b32 m0, s{S_M0A}'); o('s_nop 0')
    for q in range(4): o(dma(q))
    o('s_nop 7')
    lab('K2_LOOP')
    for rho in range(2):
        iteration(rho)
        o(f's_sub_u32 s{S_N}, s{S_N}, 1')
        o(f's_cmp_eq_u32 s{S_N}, 0')
        if rho == 0: o('s_cbranch_scc1 K2_LOOPEND')
        else: o('s_cbranch_scc0 K2_LOOP')
    lab('K2_LOOPEND')
    tr, mu, cv, ad, mx = tail_ops()
    for s in mx + tr: o(s)
    o('s_waitcnt lgkmcnt(0)')
    o(f'v_lshl_add_u64 v[{GA}:{GA+1}], v[{GA}:{GA+1}], 0, v[{L8}:{L8+1}]')
    for s in mu + cv + ad: o(s)

def iteration(rho):
    cur, nxt = Z[rho], Z[rho ^ 1]
    ro, go = 1024*rho, 128*rho
    slot = (rho ^ 1) * 32768
    tr, mu, cv, ad, mx = tail_ops()
    mfl = []
    for s in range(4):
        for t in range(2): mfl.append(mf_s(H+16*t, s, BH+(t*4+s)*4, s == 0))
    for t in range(2): mfl.append(mfx_s(nxt+16*t, t))
    for s in range(4):
        for t in range(2): mfl.append(mf_s(nxt+16*t, s, BZ+(t*4+s)*4, False))
    ex = []
    for i in range(8):
        for t in range(2):
            for c in range(2): ex.append(f'v_exp_f32 v{cur+16*t+2*i+c}, v{cur+16*t+2*i+c}')
    chain = []
    for i in range(1, 8):
        for kind in range(3):
            for t in range(2): chain.append((t, i, kind))
    nsc = OPT['nsc'] // 2
    def ops(t, i, kind, w):
        z, h = cur+16*t, H+16*t
        last = i == 7
        def rg(a): return vr(a, 2) if w == 2 else None
        if w == 2:
            if kind == 0: return [f'v_pk_fma_f32 {rg(h)}, {rg(h)}, {rg(z+2*i)}, {rg(h)}']
            if kind == 1: return [f'v_pk_fma_f32 {rg(TN+2*t) if last else rg(h)}, {rg(h+2*i)}, {rg(z)}, {rg(h)}']
            return [f'v_pk_fma_f32 {rg(TD+2*t) if last else rg(z)}, {rg(z)}, {rg(z+2*i)}, {rg(z)}']
        assert not last
        if kind == 0: return [f'v_fmac_f32 v{h+c}, v{h+c}, v{z+2*i+c}' for c in range(2)]
        if kind == 1: return [f'v_fmac_f32 v{h+c}, v{h+2*i+c}, v{z+c}' for c in range(2)]
        return [f'v_fmac_f32 v{z+c}, v{z+c}, v{z+2*i+c}' for c in range(2)]
    sc_chain = sum((ops(*c, 1) for c in chain[:nsc]), [])
    pk = sum((ops(*c, 2) for c in chain[nsc:]), [])
    add1 = [f'v_add_f32 v{cur+16*t+c}, 1.0, v{cur+16*t+c}' for t in range(2) for c in range(2)]
    aread = [f'ds_read_b128 v[{A+4*s}:{A+4*s+3}], v{AR+s} offset:{slot}' for s in range(4)]
    gaps = [[] for _ in range(18)]
    pre = [[] for _ in range(18)]
    post = []
    sched = OPT.get('sched', 0)
    ptradv = [f'v_lshl_add_u64 v[{PA}:{PB}], v[{PA}:{PB}], 0, s[{S_ADV1}:{S_ADV1+1}]',
              f'v_lshl_add_u64 v[{PC}:{PD}], v[{PC}:{PD}], 0, s[{S_ADV2}:{S_ADV2+1}]'] if rho == 1 else []
    gaadd = f'v_lshl_add_u64 v[{GA}:{GA+1}], v[{GA}:{GA+1}], 0, v[{L8}:{L8+1}]'
    garead = f'ds_read_b64 v[{GA}:{GA+1}], v{PD} offset:{go}'
    trr = [f'ds_read_b64_tr_b16 v[{BX+2*t}:{BX+2*t+1}], v{XADR} offset:{64*t}' for t in range(2)]
    m0set = f's_mov_b32 m0, s{S_M0B if slot else S_M0A}'
    head = [f'ds_read_b32 v{XW}, v{PC} offset:{128+go}'] + read_e(1024+ro) + [f'ds_read_b128 v[{R}:{R+3}], v{PA} offset:{3072+ro}']
    if sched == 0:
        gaps[0] += head + mx + tr[0:2]
        gaps[1] += ['s_waitcnt vmcnt(4)', aread[0]] + tr[2:4] + mu[0:2]
        gaps[2] += ['s_waitcnt lgkmcnt(3)'] + xadr() + trr + ex[0:2] + [gaadd]
        gaps[3] += [aread[1]] + ex[2:4] + mu[2:4]
        gaps[4] += ex[4:6] + [cv[0], cv[1], ad[0], ad[1]]
        gaps[5] += [aread[2]] + ex[6:8] + [cv[2], cv[3], ad[2], ad[3], garead]
        gaps[6] += ex[8:10] + add1[0:2]
        gaps[7] += [aread[3]] + ex[10:12] + add1[2:4]
        pre[8] += ['s_waitcnt lgkmcnt(8)']
        gaps[8] += ex[12:14] + [dma_addr(0), dma_addr(1), dma_addr(2)]
        gaps[9] += ex[14:16] + [dma_addr(3)] + ptradv
        pre[12] += ['s_waitcnt lgkmcnt(7)']
        pre[14] += ['s_waitcnt lgkmcnt(4)']
        pre[16] += ['s_waitcnt lgkmcnt(0)', m0set]
        dpos = [16, 16, 17, 17]
    else:
        gaps[0] += head + mx + tr[0:2]
        gaps[1] += ['s_waitcnt vmcnt(4)', aread[0]] + tr[2:4] + mu[0:2]
        gaps[2] += ['s_waitcnt lgkmcnt(3)'] + xadr() + trr + ex[0:2] + [gaadd]
        gaps[3] += [aread[1]] + ex[2:4] + mu[2:4]
        gaps[4] += ex[4:6] + [cv[0], cv[1]]
        gaps[5] += [aread[2]] + ex[6:8] + [cv[2], cv[3]]
        gaps[6] += ex[8:10] + add1[0:2]
        gaps[7] += [aread[3]] + ex[10:12] + add1[2:4]
        pre[8] += ['s_waitcnt lgkmcnt(3)']
        gaps[8] += ex[12:14] + [dma_addr(0), dma_addr(1), dma_addr(2)]
        gaps[9] += ex[14:16] + [dma_addr(3)]
        pre[11] += ['s_waitcnt lgkmcnt(0)', m0set]
        if sched == 1:
            dpos = [11, 12, 13, 14]; apos = [15, 15, 16, 16]
        elif sched == 2:
            dpos = [11, 13, 15, 17]; apos = [12, 12, 14, 14]
        elif sched == 3:
            dpos = [18, 18, 18, 18]; apos = [12, 13, 14, 15]
        for k_ in range(4): gaps[apos[k_]] += [ad[k_]]
        gaps[16] += [garead]
        gaps[17] += ptradv
    rest = ex[16:]
    k = 0
    for gi in range(10, 18):
        gaps[gi] += rest[2*(gi-10):2*(gi-10)+2]
        if gi >= 11:
            e_ = (len(sc_chain) * (gi - 10)) // 7
            gaps[gi] += sc_chain[k:e_]; k = e_
    for q in range(4):
        if dpos[q] < 18: gaps[dpos[q]] += [dma(q)]
        else: pk.insert(4 + 8*q, dma(q))
    abl = str(OPT.get('abl', ''))
    def keep(s):
        if 'novm' in abl and (s.startswith('buffer_') or 'vmcnt' in s): return False
        if 'noadd' in abl and s.startswith('ds_add'): return False
        if 'nods' in abl and (s.startswith('ds_') or 'lgkmcnt' in s): return False
        if 'noexec' in abl and 'exec' in s: return False
        if 'nomfma' in abl and s.startswith('v_mfma'): return False
        if 'nopk' in abl and s.startswith('v_pk'): return False
        if 'noexp' in abl and s.startswith('v_exp'): return False
        return True
    for j in range(18):
        for s in pre[j] + [mfl[j]] + gaps[j]:
            if keep(s): o(s)
    if OPT['prio']: o('s_setprio 3')
    for s in pk:
        if keep(s): o(s)
    if OPT['prio']: o('s_setprio 0')

def safeloop():
    lab('K2_SAFE')
    o(f's_mov_b32 m0, s{S_M0A}')
    o(f's_mov_b32 s{S_T}, 1024'); o(f's_mov_b32 s{S_T2}, 128')
    lab('K2_SAFEL')
    o(f'ds_read_b128 v[{R}:{R+3}], v{PA}')
    o(f'ds_read_b32 v{XW}, v{PC}')
    for s in read_e(0): o(s)
    o(f'ds_read_b64 v[{GA}:{GA+1}], v{PD}')
    o('s_waitcnt lgkmcnt(0)')
    for q in range(4): o(dma_addr(q)); o(dma(q))
    for s in xadr(): o(s)
    for t in range(2): o(f'ds_read_b64_tr_b16 v[{BX+2*t}:{BX+2*t+1}], v{XADR} offset:{64*t}')
    o(f'v_lshl_add_u64 v[{GA}:{GA+1}], v[{GA}:{GA+1}], 0, v[{L8}:{L8+1}]')
    o(f'v_add_u32 v{PA}, s{S_T}, v{PA}'); o(f'v_add_u32 v{PB}, s{S_T}, v{PB}')
    o(f'v_add_u32 v{PC}, s{S_T2}, v{PC}'); o(f'v_add_u32 v{PD}, s{S_T2}, v{PD}')
    o('s_waitcnt vmcnt(0)')
    for s in range(4): o(f'ds_read_b128 v[{A+4*s}:{A+4*s+3}], v{AR+s}')
    o('s_waitcnt lgkmcnt(0)')
    z = Z[0]
    for t in range(2): o(mfx_s(z+16*t, t))
    for s in range(4):
        for t in range(2): mf(z+16*t, s, BZ+(t*4+s)*4, False)
    for s in range(4):
        for t in range(2): mf(H+16*t, s, BH+(t*4+s)*4, s == 0)
    o('s_nop 15')
    for k in range(32): o(f'v_exp_f32 v{z+k}, v{z+k}')
    for k in range(32): o(f'v_add_f32 v{z+k}, 1.0, v{z+k}')
    for k in range(32): o(f'v_rcp_f32 v{z+k}, v{z+k}')
    for i in range(8):
        for t in range(2):
            for c in range(2):
                r = 16*t + 2*i + c
                o(f'v_{"mul" if i == 0 else "fmac"}_f32 v{TN+2*t+c}, v{H+r}, v{z+r}')
    tr, mu, cv, ad, mx = tail_ops()
    for s in cv + ad: o(s)
    o(f's_sub_u32 s{S_N}, s{S_N}, 1'); o(f's_cmp_eq_u32 s{S_N}, 0'); o('s_cbranch_scc0 K2_SAFEL')

def epilogue():
    a, b, c = T0, T0+1, T0+2
    Y = 96
    o(f'v_lshrrev_b32 v{a}, 5, v0')
    o(f'v_mul_u32_u24 v{b}, 640, v{a}'); o(f'v_lshl_add_u32 v{b}, v{L8}, 1, v{b}'); o(f'v_add_u32 v{b}, {NODE0+128}, v{b}')
    for k in range(6): o(f'ds_read_b128 v[{Y+4*k}:{Y+4*k+3}], v{b} offset:{k*16*640}')
    o(f'ds_read_b128 v[{Y+24}:{Y+27}], v{b} offset:{6*16*640}')
    o(f's_mul_i32 s{S_T}, s{S_SB}, {NB*128}')
    o(f'v_lshl_add_u32 v{c}, v0, 2, s{S_T}')
    o(f's_mov_b32 s{S_T2}, 0x207')
    o(f's_mov_b32 s{MK}, {f2u(2.0**120):#x}')
    o(f'v_cmp_lt_f32 s[{MK+2}:{MK+3}], s{MK}, v{VMAX}')
    for k in range(7):
        if k == 6:
            o(f's_cmp_lg_u32 s{S_W}, 0'); o('s_cbranch_scc1 K2_EP_DONE')
        y = Y + 4*k
        o(f's_waitcnt lgkmcnt({6-k})')
        o(f'v_cvt_f32_f64 v{y}, v[{y}:{y+1}]'); o(f'v_cvt_f32_f64 v{y+1}, v[{y+2}:{y+3}]')
        o(f'v_mul_f32 v{y+2}, s{S_NL2}, v{y}'); o(f'v_mul_f32 v{y+3}, s{S_NL2}, v{y+1}')
        o(f'v_exp_f32 v{y+2}, v{y+2}'); o(f'v_exp_f32 v{y+3}, v{y+3}')
        o(f'v_add_f32 v{a}, v{y}, v{y+1}')
        o(f'v_add_f32 v{y+2}, 1.0, v{y+2}'); o(f'v_add_f32 v{y+3}, 1.0, v{y+3}')
        o(f'v_rcp_f32 v{y+2}, v{y+2}'); o(f'v_rcp_f32 v{y+3}, v{y+3}')
        o(f'v_cmp_class_f32 vcc, v{a}, s{S_T2}')
        o(f'v_mul_f32 v{y}, v{y}, v{y+2}'); o(f'v_mul_f32 v{y+1}, v{y+1}, v{y+3}')
        o(f's_or_b64 s[{MK+2}:{MK+3}], s[{MK+2}:{MK+3}], vcc')
        o(f'v_cvt_pk_bf16_f32 v{y}, v{y}, v{y+1}')
        o(f'buffer_store_dword v{y}, v{c}, s[{SOUT}:{SOUT+3}], 0 offen offset:{(k&1)*2048}')
        if k & 1: o(f'v_add_u32 v{c}, 4096, v{c}')
    lab('K2_EP_DONE')
    o(f'v_mov_b32 v{b}, {FLG+4}')
    o(f's_mov_b64 exec, s[{MK+2}:{MK+3}]')
    o(f'ds_write_b32 v{b}, v{ONE}')
    o('s_mov_b64 exec, -1')
    o('s_waitcnt lgkmcnt(0)')
    o('s_barrier')
    o(f'ds_read_b32 v{b}, v{b}')
    o('s_waitcnt lgkmcnt(0)')
    o(f'v_readfirstlane_b32 s{S_T}, v{b}')
    if OPT.get('abl'): o(f's_mov_b32 s{S_T}, 0')
    o(f's_andn2_b32 s{S_T}, s{S_T}, s{S_SAFE}')
    o('s_cbranch_scc0 K2_DONE')
    o(f's_mov_b32 s{S_SAFE}, 1')
    o('s_waitcnt vmcnt(0)')
    o('s_barrier')
    o('s_branch K2_TOP')
    lab('K2_DONE')
    if OPT.get('twice'):
        o('s_cmp_eq_u32 s97, 0'); o('s_cbranch_scc0 K2_DONE2')
        o('s_mov_b32 s97, 1'); o('s_waitcnt vmcnt(0)'); o('s_barrier'); o('s_branch K2_TOP')
        lab('K2_DONE2')

def kd(name, vgpr, sgpr):
    L.append(f'.amdhsa_kernel {name}')
    L.append(f'  .amdhsa_next_free_vgpr {vgpr}')
    L.append(f'  .amdhsa_next_free_sgpr {sgpr}')
    L.append(f'  .amdhsa_accum_offset {(vgpr+3)//4*4}')
    L.append('  .amdhsa_group_segment_fixed_size 0')
    L.append('  .amdhsa_kernarg_size 80')
    L.append('  .amdhsa_user_sgpr_count 2')
    L.append('  .amdhsa_user_sgpr_kernarg_segment_ptr 1')
    L.append('  .amdhsa_system_sgpr_workgroup_id_x 1')
    L.append('  .amdhsa_float_denorm_mode_32 3')
    L.append('.end_amdhsa_kernel')

hdr = open('cdna_kernels/' + NAME + '.s.ref').read().split('\n')
for h in hdr:
    if h.startswith(';') and '@launch' not in h and 'Override' not in h and 'grid=ceil' not in h: L.append(h)
L.append(f'; @launch kernel=part_kernel grid=(256,1,1) block=(832,1,1) lds={K1_LDS}')
L.append(f'; @launch kernel={NAME}_kernel grid=(256,1,1) block=(512,1,1) lds={K2_LDS}')
L.append('.amdgcn_target "amdgcn-amd-amdhsa--gfx950"')
L.append('.text')
L.append('.globl part_kernel'); L.append(f'.globl {NAME}_kernel')
k1(); k2()
L.append('.section .rodata,"a"'); L.append('.p2align 6')
kd('part_kernel', 48, 102)
L.append('.p2align 6')
kd(f'{NAME}_kernel', 256, 102)
out = OPT.get('out', 'cdna_kernels/' + NAME + '.s')
open(out, 'w').write('\n'.join(L) + '\n')
```

```python
import sys
src, out, kern, idx, amp, mm = sys.argv[1], sys.argv[2], int(sys.argv[3]), int(sys.argv[4]), int(sys.argv[5]), sys.argv[6]
s = open(src).read(); l = s.split('\n'); i = [k for k, x in enumerate(l) if '@launch' in x]
l.insert(i[-1]+1, '; @launch kernel=diag_kernel grid=(1,1,1) block=(64,1,1) lds=0')
off = (0xc00000 if kern == 1 else 0xc10000) + 4*idx
code = f'''
.p2align 8
.globl diag_kernel
.type diag_kernel,@function
diag_kernel:
    s_cmp_ge_u32 s2, 1
    s_cbranch_scc1 DG_END
    s_load_dwordx2 s[4:5], s[0:1], 72
    s_waitcnt lgkmcnt(0)
    s_mov_b32 s6, 0x1000000
    s_mov_b32 s7, 0x20000
    v_lshlrev_b32 v1, 6, v0
    s_mov_b32 s8, 0xc00000
    s_mov_b32 s9, {off}
''' + ''.join(f'''    buffer_load_dword v{2+k}, v1, s[4:7], s8 offen
    buffer_load_dword v{6+k}, v1, s[4:7], s9 offen
    v_add_u32 v1, 4096, v1
''' for k in range(4)) + f'''    s_waitcnt vmcnt(0)
    v_min3_u32 v2, v2, v3, v4
    v_min_u32 v2, v2, v5
    v_{mm}3_u32 v6, v6, v7, v8
    v_{mm}_u32 v6, v6, v9
    s_mov_b32 s10, 0
    s_mov_b32 s11, -1
    s_mov_b32 s12, {0 if mm=='max' else -1}
DG_L:
    s_nop 4
    v_readlane_b32 s13, v2, s10
    v_readlane_b32 s14, v6, s10
    s_min_u32 s11, s11, s13
    s_{mm}_u32 s12, s12, s14
    s_add_u32 s10, s10, 1
    s_cmp_lt_u32 s10, 64
    s_cbranch_scc1 DG_L
    s_sub_u32 s12, s12, s11
    s_min_u32 s12, s12, 20000
    s_mul_i32 s12, s12, {amp}
    s_memrealtime s[14:15]
    s_waitcnt lgkmcnt(0)
DG_S:
    s_memrealtime s[16:17]
    s_waitcnt lgkmcnt(0)
    s_sub_u32 s18, s16, s14
    s_cmp_lt_u32 s18, s12
    s_cbranch_scc1 DG_S
DG_END:
    s_endpgm
.section .rodata,"a"
.p2align 6
.amdhsa_kernel diag_kernel
  .amdhsa_next_free_vgpr 16
  .amdhsa_next_free_sgpr 32
  .amdhsa_accum_offset 16
  .amdhsa_group_segment_fixed_size 0
  .amdhsa_kernarg_size 80
  .amdhsa_user_sgpr_count 2
  .amdhsa_user_sgpr_kernarg_segment_ptr 1
  .amdhsa_system_sgpr_workgroup_id_x 1
.end_amdhsa_kernel
'''
t = '\n'.join(l).replace('.section .rodata,"a"', code, 1)
open(out, 'w').write(t)
```

```python
import sys
NAME = "gather_scatter__edge_featured_mpnn_egc__graph"
N = 25000; E = 800000
NB = 98
CH = 3136
WS_OFFT = 0x700000
LOG2E = 1.4426950408889634
import struct
def f2u(f): return struct.unpack('<I', struct.pack('<f', f))[0]

OPT = dict(nsc=18, prio=1, k1sc='', stamp=0)
for a in sys.argv[1:]:
    if '=' in a:
        k, v = a.split('=', 1)
        try: v = int(v)
        except ValueError: pass
        OPT[k] = v

L = []
def o(s): L.append('    ' + s)
def lab(s): L.append(s + ':')
def cm(s): L.append('    ; ' + s)
def vr(a, n=1): return f'v{a}' if n == 1 else f'v[{a}:{a+n-1}]'
def sr(a, n=1): return f's{a}' if n == 1 else f's[{a}:{a+n-1}]'
def srd(d, b, size):
    o(f's_mov_b32 s{d}, s{b}'); o(f's_mov_b32 s{d+1}, s{b+1}')
    o(f's_mov_b32 s{d+2}, {size}'); o(f's_mov_b32 s{d+3}, 0x20000')
def scan(v, t):
    for sh in (1, 2, 4, 8):
        o('s_nop 1')
        o(f'v_add_u32_dpp v{v}, v{v}, v{v} row_shr:{sh} row_mask:0xf bank_mask:0xf bound_ctrl:0')
    o('s_nop 1')
    o(f'v_add_u32_dpp v{v}, v{v}, v{v} row_bcast:15 row_mask:0xa bank_mask:0xf')
    o('s_nop 1')
    o(f'v_add_u32_dpp v{v}, v{v}, v{v} row_bcast:31 row_mask:0xc bank_mask:0xf')
def stamp(idx, kbase):
    if not OPT['stamp']: return
    o(f's_memrealtime s[98:99]' if OPT['stamp']==1 else 's_memtime s[98:99]')
    o('s_waitcnt lgkmcnt(0)')
    o(f's_mov_b32 s{kbase+idx}, s98')

K1_LDS = 2048 + CH * 8
def k1():
    L.append('.p2align 8'); L.append('.type part_kernel,@function'); lab('part_kernel')
    if OPT.get('dummyt'):
        o('s_cmp_ge_u32 s2, 512'); o('s_cbranch_scc1 K1_END')
        o('s_cmp_ge_u32 s2, 256'); o('s_cbranch_scc0 K1_PART')
        o('v_cmp_gt_u32 vcc, 512, v0'); o('s_cbranch_vccz K1_END')
        o('s_load_dwordx2 s[4:5], s[0:1], 0'); o('s_load_dwordx2 s[10:11], s[0:1], 72'); o('s_load_dwordx2 s[6:7], s[0:1], 48')
        o('s_waitcnt lgkmcnt(0)')
        srd(16, 4, N*128); srd(28, 10, 0x4000000); srd(20, 6, 129*128)
        o('s_sub_u32 s3, s2, 256'); o('s_mul_i32 s12, s3, 12544')
        o('v_lshlrev_b32 v1, 4, v0')
        o('buffer_load_dwordx4 v[8:11], v1, s[16:19], s12 offen')
        o('s_add_u32 s12, s12, 4352')
        o('buffer_load_dwordx4 v[12:15], v1, s[16:19], s12 offen')
        o('buffer_load_dwordx4 v[16:19], v1, s[20:23], 0 offen')
        o('s_movk_i32 s12, 8192')
        o('buffer_load_dwordx4 v[20:23], v1, s[20:23], s12 offen')
        o('s_waitcnt vmcnt(0)')
        o('s_barrier')
        for k in range(100): o('v_add_u32 v8, v9, v8')
        nst = OPT['dummyt']
        if OPT.get('wide'):
            o(f's_mul_i32 s12, s3, {nst*2048}'); o('s_add_u32 s12, s12, 0x1000000')
            for k in range(nst//4):
                o(f'buffer_store_dwordx4 v[8:11], v1, s[28:31], s12 offen {OPT["k1sc"]}'); o('s_add_u32 s12, s12, 8192')
        else:
            o('v_lshlrev_b32 v1, 2, v0')
            o(f's_mul_i32 s12, s3, {nst*2048}'); o('s_add_u32 s12, s12, 0x1000000')
            for k in range(nst):
                o(f'buffer_store_dword v{8+(k&15)}, v1, s[28:31], s12 offen {OPT["k1sc"]}'); o('s_add_u32 s12, s12, 2048')
        o('s_endpgm')
        lab('K1_PART')
    o('s_cmp_ge_u32 s2, 256'); o('s_cbranch_scc1 K1_END')
    o('s_load_dwordx4 s[4:7], s[0:1], 8')
    o('s_load_dwordx2 s[8:9], s[0:1], 24')
    o('s_load_dwordx2 s[10:11], s[0:1], 72')
    stamp(0, 80)
    o('s_and_b32 s3, s2, 7'); o('s_lshl_b32 s3, s3, 5'); o('s_lshr_b32 s12, s2, 3'); o('s_add_u32 s3, s3, s12')
    o(f's_mul_i32 s12, s3, {CH//4}')
    o('v_add_u32 v1, s12, v0')
    o(f'v_cmp_gt_u32 vcc, {CH//4}, v0')
    o(f's_mov_b32 s13, {E//4}')
    o('v_cmp_gt_u32 s[14:15], s13, v1')
    o('s_and_b64 s[14:15], s[14:15], vcc')
    o('v_lshlrev_b32 v2, 4, v1'); o('v_lshlrev_b32 v3, 3, v1')
    o('v_lshlrev_b32 v4, 2, v0'); o('v_mov_b32 v5, 0')
    o('v_cmp_gt_u32 vcc, 256, v0')
    o('s_mov_b64 exec, vcc')
    o('ds_write_b32 v4, v5')
    o('s_waitcnt lgkmcnt(0)')
    srd(16, 8, E*4); srd(20, 6, E*4); srd(24, 4, E*2)
    o('s_mov_b64 exec, s[14:15]')
    o('buffer_load_dwordx4 v[8:11], v2, s[16:19], 0 offen')
    o('buffer_load_dwordx4 v[12:15], v2, s[20:23], 0 offen')
    o('buffer_load_dwordx2 v[16:17], v3, s[24:27], 0 offen')
    srd(28, 10, WS_OFFT + 256*1024)
    o(f's_mov_b32 s36, {-NB & 0xffffffff:#x}'); o('s_mov_b32 s37, 0xffff0000')
    o('v_mov_b32 v5, 1')
    o('s_barrier')
    o('s_waitcnt vmcnt(2)')
    stamp(1, 80)
    for i in range(4):
        o(f'v_mul_u32_u24 v{28+i}, 5350, v{8+i}')
        o(f'v_lshrrev_b32 v{28+i}, 19, v{28+i}')
        o(f'v_mad_i32_i24 v{21+2*i}, v{28+i}, s36, v{8+i}')
        o(f'v_lshlrev_b32 v{28+i}, 2, v{28+i}')
        o(f'ds_add_rtn_u32 v{32+i}, v{28+i}, v5')
    for i in range(4): o(f'v_lshlrev_b32 v{21+2*i}, 2, v{21+2*i}')
    o('s_mov_b64 exec, -1')
    o('v_and_b32 v6, 63, v0'); o('v_lshlrev_b32 v6, 4, v6')
    o('s_waitcnt lgkmcnt(0)')
    o('s_barrier')
    o('ds_read_b128 v[36:39], v6')
    o('s_waitcnt lgkmcnt(0)')
    o('v_add_u32 v41, v36, v37'); o('v_add_u32 v42, v41, v38'); o('v_add_u32 v43, v42, v39')
    o('v_mov_b32 v44, v43')
    scan(44, 45)
    o('v_sub_u32 v44, v44, v43')
    o('v_add_u32 v45, v44, v36'); o('v_add_u32 v46, v44, v41'); o('v_add_u32 v47, v44, v42')
    o('ds_write_b128 v6, v[44:47] offset:1024')
    o('s_mov_b64 exec, s[14:15]')
    for i in range(4): o(f'ds_read_b32 v{28+i}, v{28+i} offset:1024')
    o('s_waitcnt vmcnt(0)')
    o('v_lshl_or_b32 v20, v16, 16, v12'); o('v_and_or_b32 v22, v16, s37, v13')
    o('v_lshl_or_b32 v24, v17, 16, v14'); o('v_and_or_b32 v26, v17, s37, v15')
    for i in range(4):
        o(f's_waitcnt lgkmcnt({3})')
        o(f'v_add_lshl_u32 v{28+i}, v{28+i}, v{32+i}, 3')
        o(f'ds_write_b64 v{28+i}, v[{20+2*i}:{21+2*i}] offset:2048')
    o('s_mov_b64 exec, -1')
    o('v_readfirstlane_b32 s38, v0'); o('s_lshr_b32 s38, s38, 6')
    o('s_cmp_ge_u32 s38, 4'); o('s_cbranch_scc1 K1_NOOFF')
    o('v_lshlrev_b32 v6, 8, v6')
    o('s_lshl_b32 s39, s38, 10'); o('s_lshl_b32 s40, s3, 2'); o('s_add_u32 s39, s39, s40'); o(f's_add_u32 s39, s39, {WS_OFFT}')
    for i in range(4):
        o(f's_cmp_eq_u32 s38, {i}'); o(f's_cbranch_scc0 K1_OFF{i}')
        o(f'v_lshl_or_b32 v7, v{36+i}, 16, v{44+i}')
        lab(f'K1_OFF{i}')
    o(f'buffer_store_dword v7, v6, s[28:31], s39 offen {OPT["k1sc"]}')
    lab('K1_NOOFF')
    o('v_lshlrev_b32 v4, 4, v0')
    o(f's_mul_i32 s39, s3, {CH*8}')
    o(f's_add_u32 s40, s39, {CH*4}')
    o(f'v_cmp_gt_u32 vcc, {CH//4}, v0')
    o('s_waitcnt lgkmcnt(0)')
    o('s_barrier')
    o('s_mov_b64 exec, vcc')
    o('ds_read_b128 v[8:11], v4 offset:2048')
    o(f'ds_read_b128 v[12:15], v4 offset:{2048+CH*4}')
    o('s_waitcnt lgkmcnt(1)')
    o(f'buffer_store_dwordx4 v[8:11], v4, s[28:31], s39 offen {OPT["k1sc"]}')
    o('s_waitcnt lgkmcnt(0)')
    o(f'buffer_store_dwordx4 v[12:15], v4, s[28:31], s40 offen {OPT["k1sc"]}')
    if OPT['stamp']:
        stamp(2, 80)
        o('s_waitcnt vmcnt(0)')
        stamp(3, 80)
        emit_stamps(80, 4, 10, 0x800000, 'K1')
    lab('K1_END'); o('s_endpgm')

def emit_stamps(kbase, n, wsreg, off, tag):
    o('v_cmp_eq_u32 vcc, 0, v0'); o('s_mov_b64 exec, vcc'); o(f's_cbranch_execz {tag}_NOST')
    srd(92, wsreg, 0x1000000)
    o('s_lshl_b32 s96, s2, 6'); o(f's_add_u32 s96, s96, {off}')
    o('v_mov_b32 v1, 0')
    for i in range(n):
        o(f'v_mov_b32 v2, s{kbase+i}')
        o(f'buffer_store_dword v2, v1, s[92:95], s96 offen offset:{4*i}')
        o('s_waitcnt vmcnt(0)')
    lab(f'{tag}_NOST')

RECS = 0; NTILE = 216; GT = NTILE*128; CNT = GT + NTILE*16; FLG = CNT + 512
BASE = 31744; CROW = 32256; DUMMY = 32512; NODE0 = DUMMY + 640
RING0 = 96000; RING1 = RING0 + 32768; K2_LDS = RING1 + 32768
MAXG = (NTILE - 24) * 4
assert FLG + 16 <= BASE and NODE0 + NB*640 <= RING0 and K2_LDS <= 163840
V_L = 1; CD = 2; AR = 6; PA = 10; PB = 11; PC = 12; PD = 13; CX = 14; XADR = 15
L8 = 16; AX = 18; VMAX = 20; TRA = 21; VJ0 = 22; VJ1 = 23; VLB = 24; ONE = 25
T0 = 26
BZ = 32; BH = 64; Z = (96, 128); H = 160; A = 192
BX = 208; TN = 212; TD = 216; F = 220; R = 228; XW = 232; GA = 234
RD = 96; RK = 128; OF = 144; PW = 160; PD_ = 208; WT = 240
S_W = 3; SX = 8; SWS = 12; SOUT = 16; SG = 20; SV = 24; SU = 28
S_SB = 32; S_RB = 33; S_LIM = 34; S_SAFE = 35; S_MORE = 36; S_N = 37; S_T = 38; S_T2 = 39
S_M0A = 40; S_M0B = 41; S_ADV1 = 42; S_ADV2 = 44; S_128 = 46; S_NL2 = 47
MK = 48
S_LO = 4; S_HI = 6
P_ = 80
def k2():
    L.append('.p2align 8'); L.append(f'.type {NAME}_kernel,@function'); lab(f'{NAME}_kernel')
    o('s_cmp_ge_u32 s2, 256'); o('s_cbranch_scc1 K2_END')
    o(f's_mov_b32 s{S_SAFE}, {OPT.get("safe",0)}')
    if OPT.get('twice'): o('s_mov_b32 s97, 0')
    lab('K2_TOP')
    o('s_mov_b64 exec, -1')
    o(f's_load_dwordx2 s[48:49], s[0:1], 0')
    o(f's_load_dwordx8 s[52:59], s[0:1], 32')
    o(f's_load_dwordx2 s[50:51], s[0:1], 72')
    stamp(0, 80)
    o(f's_and_b32 s{S_SB}, s2, 7'); o(f's_lshl_b32 s{S_SB}, s{S_SB}, 5'); o(f's_lshr_b32 s{S_T}, s2, 3'); o(f's_add_u32 s{S_SB}, s{S_SB}, s{S_T}')
    o(f'v_readfirstlane_b32 s{S_W}, v0'); o(f's_lshr_b32 s{S_W}, s{S_W}, 6')
    o(f's_mov_b32 s{S_RB}, 0'); o(f's_mov_b32 s{S_LIM}, 32')
    o(f's_mov_b32 s{S_LO}, -1'); o(f's_mov_b32 s{S_LO+1}, 0'); o(f's_mov_b32 s{S_HI}, 0'); o(f's_mov_b32 s{S_HI+1}, -1')
    o(f's_mov_b32 s{S_ADV1}, 2048'); o(f's_mov_b32 s{S_ADV1+1}, 2048'); o(f's_mov_b32 s{S_ADV2}, 256'); o(f's_mov_b32 s{S_ADV2+1}, 256')
    o(f's_mov_b32 s{S_128}, 128'); o(f's_mov_b32 s{S_NL2}, {f2u(-LOG2E):#x}')
    o(f's_lshl_b32 s{S_M0A}, s{S_W}, 12'); o(f's_add_u32 s{S_M0A}, s{S_M0A}, {RING0}'); o(f's_add_u32 s{S_M0B}, s{S_M0A}, 32768')
    o(f'v_and_b32 v{V_L}, 63, v0')
    a, b, c, d, e, f = range(T0, T0+6)
    cm('segment lane constants')
    o(f'v_lshrrev_b32 v{a}, 4, v0')
    o(f'v_lshlrev_b32 v{OF}, 5, v{a}')
    o(f'v_and_b32 v{b}, 15, v0')
    o(f'v_lshlrev_b32 v{VLB}, 4, v{b}')
    o(f's_mov_b32 s{S_T}, {8*CH*8}')
    o(f'v_mad_u32_u24 v{VLB}, v{a}, s{S_T}, v{VLB}')
    cm('DMA constants')
    o(f'v_lshrrev_b32 v{a}, 4, v{V_L}'); o(f'v_and_b32 v{b}, 7, v{V_L}'); o(f'v_xor_b32 v{a}, v{a}, v{b}')
    o(f'v_lshlrev_b32 v{a}, 4, v{a}'); o(f'v_xor_b32 v{b}, 64, v{a}')
    o(f'v_add_u32 v{CD}, 3072, v{a}'); o(f'v_add_u32 v{CD+1}, 2048, v{b}'); o(f'v_add_u32 v{CD+2}, 1024, v{a}'); o(f'v_mov_b32 v{CD+3}, v{b}')
    o('s_waitcnt lgkmcnt(0)')
    srd(SWS, 50, WS_OFFT + 256*1024)
    issue_offs()
    srd(SG, 56, 129*128); srd(SV, 54, 8192); srd(SU, 52, 8192); srd(SOUT, 58, N*128)
    o(f's_sub_u32 s{SX}, s48, 3072'); o(f's_subb_u32 s{SX+1}, s49, 0'); o(f's_mov_b32 s{SX+2}, {N*128+3072}'); o(f's_mov_b32 s{SX+3}, 0x20000')
    if OPT['stamp']: o('s_mov_b64 s[90:91], s[50:51]')
    cm('weights')
    o(f'v_lshlrev_b32 v{a}, 4, v0')
    o(f's_movk_i32 s{S_T}, 8192')
    o(f'buffer_load_dwordx4 v[{WT}:{WT+3}], v{a}, s[{SG}:{SG+3}], s{S_T} offen')
    o(f'v_lshlrev_b32 v{b}, 4, v{V_L}')
    o(f's_movk_i32 s{S_T}, 16384')
    o(f'buffer_load_dwordx4 v[{WT+4}:{WT+7}], v{b}, s[{SG}:{SG+3}], s{S_T} offen')
    o(f's_lshl_b32 s{S_T}, s{S_W}, 10'); o(f's_add_u32 s{S_T}, s{S_T}, {RING1}')
    o(f's_mov_b32 m0, s{S_T}'); o('s_nop 0')
    o(f'buffer_load_dwordx4 v{a}, s[{SG}:{SG+3}], 0 offen lds')
    o(f's_add_u32 m0, s{S_T}, 16384'); o('s_nop 0')
    o(f'buffer_load_dwordx4 v{a}, s[{SV}:{SV+3}], 0 offen lds')
    o(f's_add_u32 m0, s{S_T}, 24576'); o('s_nop 0')
    o(f'buffer_load_dwordx4 v{a}, s[{SU}:{SU+3}], 0 offen lds')
    cm('own x rows -> ring slot 0')
    o(f's_and_b32 s{S_T}, s{S_W}, 3'); o(f's_lshl_b32 s{S_T}, s{S_T}, 5'); o(f's_mul_i32 s{S_T2}, s{S_SB}, {NB}'); o(f's_add_u32 s{S_T}, s{S_T}, s{S_T2}')
    o(f'v_lshrrev_b32 v{c}, 3, v{V_L}'); o(f'v_lshl_add_u32 v{c}, v{c}, 2, s{S_T}')
    o(f's_mov_b32 m0, s{S_M0A}')
    for q in range(4):
        o(f'v_lshl_add_u32 v{d}, v{c}, 7, v{CD+q}')
        if q: o(f'v_add_u32 v{d}, {128*q}, v{d}')
        o(f'buffer_load_dwordx4 v{d}, s[{SX}:{SX+3}], 0 offen offset:{1024*q} lds')
    prefill()
    cm('zero dummy XA row')
    o(f'v_cmp_gt_u32 vcc, 8, v0'); o('s_mov_b64 exec, vcc')
    o(f'ds_write_b128 v{a}, v[{RK+4}:{RK+7}] offset:{DUMMY}')
    o('s_mov_b64 exec, -1')
    cm('main loop lane constants')
    x, y, v_, u0, u1, hh = RK+8, RK+9, RK+10, RK+11, RK+12, RK+13
    g, gb, t1 = RK+14, RK+15, c
    o(f'v_and_b32 v{x}, 1, v{V_L}'); o(f'v_bfe_u32 v{y}, v{V_L}, 1, 1'); o(f'v_bfe_u32 v{v_}, v{V_L}, 2, 1')
    o(f'v_bfe_u32 v{u0}, v{V_L}, 3, 1'); o(f'v_bfe_u32 v{u1}, v{V_L}, 4, 1'); o(f'v_lshrrev_b32 v{hh}, 5, v{V_L}')
    o(f'v_lshl_add_u32 v{g}, v{v_}, 1, v{x}')
    o(f'v_xor_b32 v{gb}, v{v_}, v{u0}'); o(f'v_xor_b32 v{gb}, v{gb}, v{u1}')
    o(f'v_lshl_add_u32 v{gb}, v{gb}, 1, v{y}')
    o(f'v_lshl_add_u32 v{u0}, v{g}, 1, v{u1}')
    o(f'v_lshl_add_u32 v{PB}, v{u0}, 2, v{gb}')
    o(f'v_lshlrev_b32 v{PB}, 2, v{PB}')
    o(f'v_lshl_add_u32 v{u0}, v{gb}, 3, v{u0}')
    o(f'v_lshl_add_u32 v{u0}, v{u0}, 7, s{S_M0A}')
    o(f'v_lshl_add_u32 v{u1}, v{y}, 2, v{g}')
    o(f'v_xor_b32 v{u1}, v{u1}, v{hh}')
    for s in range(4):
        o(f'v_xor_b32 v{t1}, {2*s}, v{u1}')
        o(f'v_lshl_add_u32 v{AR+s}, v{t1}, 4, v{u0}')
    o(f'v_lshlrev_b32 v{t1}, 4, v{x}'); o(f'v_mov_b32 v{d}, 0x3f80'); o(f'v_lshlrev_b32 v{t1}, v{t1}, v{d}')
    o(f'v_cmp_eq_u32 vcc, 0, v{v_}'); o('s_nop 1')
    o(f'v_cndmask_b32 v{AX}, 0, v{t1}, vcc')
    o(f'v_sub_u32 v{AX+1}, v{t1}, v{AX}')
    o(f'v_cndmask_b32 v{AX+1}, v{AX+1}, 0, s[{S_HI}:{S_HI+1}]')
    o(f'v_bfe_u32 v{t1}, v{V_L}, 4, 1'); o(f'v_lshlrev_b32 v{t1}, 5, v{t1}'); o(f'v_and_b32 v{d}, 3, v{V_L}')
    o(f'v_lshl_add_u32 v{CX}, v{d}, 3, v{t1}')
    o(f'v_bfe_u32 v{d}, v{V_L}, 2, 2')
    o(f'v_lshlrev_b32 v{PC}, 2, v{d}')
    o(f'v_lshl_add_u32 v{e}, v{hh}, 3, v{d}'); o(f'v_lshl_add_u32 v{TRA}, v{e}, 7, v{CX}'); o(f'v_add_u32 v{TRA}, {RING1}, v{TRA}')
    o(f'v_cmp_eq_u32 vcc, 1, v{d}'); o(f'v_mov_b32 v{e}, {DUMMY}'); o(f'v_mov_b32 v{f}, {CROW}')
    o(f'v_cndmask_b32 v{XADR}, v{e}, v{f}, vcc'); o(f'v_add_u32 v{XADR}, v{XADR}, v{CX}')
    o(f'v_and_b32 v{L8}, 31, v{V_L}'); o(f'v_lshlrev_b32 v{L8}, 3, v{L8}'); o(f'v_mov_b32 v{L8+1}, v{L8}')
    o(f'v_mov_b32 v{VMAX}, 0'); o(f'v_mov_b32 v{ONE}, 1')
    o('s_waitcnt vmcnt(9)')
    stamp(1, 80)
    issue_recs()
    cm('scale W_B and c')
    o('s_waitcnt vmcnt(15)')
    o(f's_mov_b32 s{S_T}, 0xffff0000')
    for k in range(8):
        o(f'v_lshlrev_b32 v{WT+8}, 16, v{WT+k}'); o(f'v_and_b32 v{WT+9}, s{S_T}, v{WT+k}')
        o(f'v_mul_f32 v{WT+8}, s{S_NL2}, v{WT+8}'); o(f'v_mul_f32 v{WT+9}, s{S_NL2}, v{WT+9}')
        o(f'v_cvt_pk_bf16_f32 v{WT+k}, v{WT+8}, v{WT+9}')
    o(f'v_add_u32 v{a}, {RING1+8192}, v{a}')
    o(f'ds_write_b128 v{a}, v[{WT}:{WT+3}]')
    o(f'v_cmp_gt_u32 vcc, 8, v0'); o('s_mov_b64 exec, vcc')
    o(f'ds_write_b128 v{b}, v[{WT+4}:{WT+7}] offset:{CROW}')
    o('s_mov_b64 exec, -1')
    o('s_waitcnt vmcnt(8) lgkmcnt(0)')
    o('s_barrier')
    stamp(2, 80)
    cm('XA / XU')
    o(f's_lshr_b32 s{S_T}, s{S_W}, 2'); o(f's_mul_i32 s{S_T}, s{S_T}, 24576')
    o(f'v_add_u32 v{a}, s{S_T}, v{TRA}')
    for s in range(4): o(f'ds_read_b128 v[{A+4*s}:{A+4*s+3}], v{AR+s}')
    for t in range(2):
        for s in range(4):
            for hf in range(2):
                r = PW + (t*4+s)*4 + 2*hf
                o(f'ds_read_b64_tr_b16 v[{r}:{r+1}], v{a} offset:{s*2048+hf*512+t*64}')
        o(f's_waitcnt lgkmcnt(0)')
        for s in range(4):
            D = PD_ + 16*t; r = PW + (t*4+s)*4
            o(f'v_mfma_f32_32x32x16_bf16 v[{D}:{D+15}], v[{A+4*s}:{A+4*s+3}], v[{r}:{r+3}], ' + ('0' if s == 0 else f'v[{D}:{D+15}]'))
    cm('B operands')
    n = 0
    for mat, base in ((8192, BZ), (16384, BH)):
        for t in range(2):
            for s in range(4):
                for hf in range(2):
                    r = base + (t*4+s)*4 + 2*hf
                    o(f'ds_read_b64_tr_b16 v[{r}:{r+1}], v{TRA} offset:{mat+s*2048+hf*512+t*64}')
                    n += 1
                    if n % 8 == 0: o('s_waitcnt lgkmcnt(7)')
    o(f's_and_b32 s{S_T}, s{S_W}, 3'); o(f's_mul_i32 s{S_T2}, s{S_T}, {32*640}'); o(f's_add_u32 s{S_T2}, s{S_T2}, {NODE0}')
    o(f'v_lshrrev_b32 v{c}, 5, v{V_L}')
    o(f'v_mul_u32_u24 v{a}, {18*640}, v{c}'); o(f'v_mul_u32_u24 v{b}, {14*640}, v{c}')
    o(f'v_add_u32 v{a}, s{S_T2}, v{a}'); o(f'v_add_u32 v{b}, s{S_T2}, v{b}'); o(f'v_add_u32 v{b}, {2*640}, v{b}')
    def rowoff(r):
        x_, y_, u0_, u1_ = r & 1, (r >> 1) & 1, (r >> 2) & 1, r >> 3
        return (a if (u0_ ^ u1_) == 0 else b), (8*x_ + 4*u1_ + y_) * 640
    o(f's_cmp_ge_u32 s{S_W}, 4'); o('s_cbranch_scc1 K2_XU')
    o(f'v_lshrrev_b32 v{c}, 2, v{L8}'); o(f'v_add_u32 v{a}, v{a}, v{c}'); o(f'v_add_u32 v{b}, v{b}, v{c}')
    for k in range(32): o(f'v_mul_f32 v{PD_+k}, s{S_NL2}, v{PD_+k}')
    for k in range(16): o(f'v_cvt_pk_bf16_f32 v{PD_+2*k}, v{PD_+2*k}, v{PD_+2*k+1}')
    o(f's_cmp_eq_u32 s{S_T}, 3'); o('s_cbranch_scc1 K2_XA3')
    n = 0
    for t in range(2):
        for r in range(16):
            br, off = rowoff(r)
            o(f'ds_write_b16{"_d16_hi" if r & 1 else ""} v{br}, v{PD_+16*t+(r&~1)} offset:{off+64*t}')
            n += 1
            if n % 8 == 0: o('s_waitcnt lgkmcnt(7)')
    o('s_branch K2_HIST')
    lab('K2_XA3')
    o(f's_mov_b64 exec, s[{S_LO}:{S_LO+1}]')
    for t in range(2):
        for r in (0, 2):
            br, off = rowoff(r)
            o(f'ds_write_b16 v{br}, v{PD_+16*t+r} offset:{off+64*t}')
    o('s_mov_b64 exec, -1')
    o('s_branch K2_HIST')
    lab('K2_XU')
    o(f'v_add_u32 v{a}, v{a}, v{L8}'); o(f'v_add_u32 v{b}, v{b}, v{L8}')
    o(f's_cmp_eq_u32 s{S_T}, 3'); o('s_cbranch_scc1 K2_XU3')
    n = 0
    for t in range(2):
        for r in range(16):
            br, off = rowoff(r); tmp = PW + 2*r
            o(f'v_cvt_f64_f32 v[{tmp}:{tmp+1}], v{PD_+16*t+r}')
            o(f'ds_write_b64 v{br}, v[{tmp}:{tmp+1}] offset:{off+128+256*t}')
            n += 1
            if n % 8 == 0: o('s_waitcnt lgkmcnt(7)')
    o('s_branch K2_HIST')
    lab('K2_XU3')
    o(f's_mov_b64 exec, s[{S_LO}:{S_LO+1}]')
    for t in range(2):
        for r in (0, 2):
            br, off = rowoff(r); tmp = PW + 2*r + 8*t
            o(f'v_cvt_f64_f32 v[{tmp}:{tmp+1}], v{PD_+16*t+r}')
            o(f'ds_write_b64 v{br}, v[{tmp}:{tmp+1}] offset:{off+128+256*t}')
    o('s_mov_b64 exec, -1')
    o('s_branch K2_HIST')

    lab('K2_ROUND')
    o(f'v_lshrrev_b32 v{a}, 4, v0'); o(f'v_lshlrev_b32 v{OF}, 5, v{a}')
    issue_offs()
    o(f'v_lshlrev_b32 v{a}, 4, v0')
    prefill()
    o('s_waitcnt vmcnt(0)')
    issue_recs()
    o('s_waitcnt lgkmcnt(0)')
    o('s_barrier')

    lab('K2_HIST')
    stamp(3, 80)
    o('s_waitcnt lgkmcnt(0)')
    for i in range(8):
        o(f's_waitcnt vmcnt({7-i})')
        for k in range(2):
            m = MK + 4*i + 2*k
            o(f's_mov_b64 exec, s[{m}:{m+1}]')
            o(f'ds_add_rtn_u32 v{RK+2*i+k}, v{RD+4*i+2*k+1}, v{ONE} offset:{CNT}')
        if i == 6: o('s_waitcnt lgkmcnt(8)')
    o('s_mov_b64 exec, -1')
    o(f'v_max3_u32 v{a}, v{OF}, v{OF+1}, v{OF+2}'); o(f'v_max3_u32 v{a}, v{a}, v{OF+3}, v{OF+4}')
    o(f'v_max3_u32 v{a}, v{a}, v{OF+5}, v{OF+6}'); o(f'v_max_u32 v{a}, v{a}, v{OF+7}')
    o(f'v_lshrrev_b32 v{a}, 16, v{a}')
    o(f's_add_u32 s{S_T}, s{S_RB}, s{S_LIM}')
    o(f'v_cmp_lt_u32 vcc, s{S_T}, v{a}')
    o(f'v_mov_b32 v{b}, {FLG}')
    o('s_mov_b64 exec, vcc')
    o(f'ds_write_b32 v{b}, v{ONE}')
    o('s_mov_b64 exec, -1')
    o(f'v_lshlrev_b32 v{c}, 3, v{V_L}')
    o('s_waitcnt lgkmcnt(0)')
    o('s_barrier')
    stamp(4, 80)
    o(f'ds_read_b64 v[{e}:{f}], v{c} offset:{CNT}')
    o(f'ds_read_b32 v{b}, v{b}')
    o(f'v_and_b32 v{WT}, 0x1fc, v0')
    o(f'ds_read_b32 v{WT+1}, v{WT} offset:{CNT}')
    o('s_waitcnt lgkmcnt(1)')
    o(f'v_add_u32 v{e}, 7, v{e}'); o(f'v_add_u32 v{f}, 7, v{f}')
    o(f'v_lshrrev_b32 v{e}, 3, v{e}'); o(f'v_lshrrev_b32 v{f}, 3, v{f}')
    o(f'v_readfirstlane_b32 s{S_MORE}, v{b}')
    o(f'v_add_u32 v{f}, v{e}, v{f}'); o(f'v_mov_b32 v{a}, v{f}')
    scan(a, b)
    o('s_nop 0')
    o(f'v_readlane_b32 s{S_T}, v{a}, 63')
    o(f'v_sub_u32 v{a}, v{a}, v{f}')
    o(f'v_lshlrev_b32 v{a}, 5, v{a}'); o(f'v_lshl_add_u32 v{b}, v{e}, 5, v{a}')
    o(f's_cmp_gt_u32 s{S_T}, {MAXG}'); o('s_cbranch_scc0 K2_FITS')
    o(f's_mov_b32 s{S_LIM}, 16')
    o('s_waitcnt lgkmcnt(0)')
    o('s_barrier')
    o('s_branch K2_ROUND')
    lab('K2_FITS')
    o(f'ds_write_b64 v{c}, v[{a}:{b}] offset:{BASE}')
    o(f'ds_read_b32 v{WT+2}, v{WT} offset:{BASE}')
    for half in range(2):
        for j in range(8*half, 8*half+8):
            m = MK + 2*j
            o(f's_mov_b64 exec, s[{m}:{m+1}]')
            o(f'ds_read_b32 v{RD+2*j+1}, v{RD+2*j+1} offset:{BASE}')
        for j in range(8*half, 8*half+8):
            m = MK + 2*j
            o(f's_mov_b64 exec, s[{m}:{m+1}]')
            o('s_waitcnt lgkmcnt(7)')
            o(f'v_lshl_add_u32 v{RD+2*j+1}, v{RK+j}, 2, v{RD+2*j+1}')
            o(f'ds_write_b32 v{RD+2*j+1}, v{RD+2*j}')
        if half == 0: o('s_waitcnt lgkmcnt(7)')
    o('s_mov_b64 exec, -1')
    cm('group table')
    o(f'v_add_u32 v{WT+1}, 7, v{WT+1}'); o(f'v_lshrrev_b32 v{WT+1}, 3, v{WT+1}')
    o(f'v_lshrrev_b32 v{WT+2}, 3, v{WT+2}')
    o(f'v_lshl_add_u32 v{WT+1}, v{WT+1}, 2, v{WT+2}')
    o(f'v_and_b32 v{WT+3}, 3, v0'); o(f'v_lshl_add_u32 v{WT+2}, v{WT+3}, 2, v{WT+2}')
    o(f'v_mul_u32_u24 v{WT}, 160, v{WT}'); o(f'v_add_u32 v{WT}, {NODE0}, v{WT}')
    lab('K2_GT')
    o(f'v_cmp_lt_u32 vcc, v{WT+2}, v{WT+1}')
    o('s_and_b64 exec, exec, vcc'); o('s_cbranch_execz K2_GTD')
    o(f'ds_write_b32 v{WT+2}, v{WT} offset:{GT}')
    o(f'v_add_u32 v{WT+2}, 16, v{WT+2}')
    o('s_waitcnt lgkmcnt(8)')
    o('s_branch K2_GT')
    lab('K2_GTD')
    o('s_mov_b64 exec, -1')
    o(f's_add_u32 s{S_T}, s{S_T}, 3'); o(f's_lshr_b32 s{S_T}, s{S_T}, 2')
    o(f's_add_u32 s{S_N}, s{S_T}, 7'); o(f's_sub_u32 s{S_N}, s{S_N}, s{S_W}'); o(f's_lshr_b32 s{S_N}, s{S_N}, 3')
    o(f's_lshl_b32 s{S_T}, s{S_W}, 7'); o(f's_lshl_b32 s{S_T2}, s{S_W}, 4'); o(f's_add_u32 s{S_T2}, s{S_T2}, {GT}')
    o(f'v_lshrrev_b32 v{PA}, 3, v{V_L}'); o(f'v_lshl_add_u32 v{PA}, v{PA}, 4, s{S_T}')
    o(f'v_and_b32 v{PB}, 127, v{PB}'); o(f'v_add_u32 v{PB}, s{S_T}, v{PB}')
    o(f'v_and_b32 v{PC}, 15, v{PC}'); o(f'v_add_u32 v{PC}, s{S_T2}, v{PC}')
    o(f'v_lshrrev_b32 v{PD}, 5, v{V_L}'); o(f'v_lshl_add_u32 v{PD}, v{PD}, 3, s{S_T2}')
    o('s_waitcnt lgkmcnt(0)')
    o('s_barrier')
    stamp(5, 80)
    o(f's_cmp_eq_u32 s{S_N}, 0'); o('s_cbranch_scc1 K2_LOOPDONE')
    o(f's_cmp_lg_u32 s{S_SAFE}, 0'); o('s_cbranch_scc1 K2_SAFE')
    mainloop()
    o('s_branch K2_LOOPDONE')
    safeloop()
    lab('K2_LOOPDONE')
    o('s_waitcnt vmcnt(0) lgkmcnt(0)')
    stamp(6, 80)
    o('s_barrier')
    o(f's_cmp_eq_u32 s{S_MORE}, 0'); o('s_cbranch_scc1 K2_FIN')
    o(f's_add_u32 s{S_RB}, s{S_RB}, s{S_LIM}')
    o('s_branch K2_ROUND')
    lab('K2_FIN')
    stamp(7, 80)
    epilogue()
    if OPT['stamp']:
        o('s_waitcnt vmcnt(0)')
        stamp(8, 80)
        emit_stamps(80, 9, 90, 0x810000, 'K2')
    lab('K2_END'); o('s_endpgm')

def issue_offs():
    o(f's_lshl_b32 s{S_T}, s{S_SB}, 10'); o(f's_add_u32 s{S_T}, s{S_T}, {WS_OFFT}')
    o(f'buffer_load_dwordx4 v[{OF+4}:{OF+7}], v{OF}, s[{SWS}:{SWS+3}], s{S_T} offen offset:16')
    o(f'buffer_load_dwordx4 v[{OF}:{OF+3}], v{OF}, s[{SWS}:{SWS+3}], s{S_T} offen')

def prefill():
    a = T0
    for k in range(4): o(f'v_mov_b32 v{RK+k}, {DUMMY}'); o(f'v_mov_b32 v{RK+4+k}, 0')
    for k in range(3): o(f'ds_write_b128 v{a}, v[{RK}:{RK+3}] offset:{8192*k}')
    assert CNT > 24576 and (CNT - 24576) % 16 == 0
    o(f'v_cmp_gt_u32 vcc, {(CNT-24576)//16}, v0'); o('s_mov_b64 exec, vcc')
    o(f'ds_write_b128 v{a}, v[{RK}:{RK+3}] offset:24576')
    o(f'v_cmp_gt_u32 vcc, 33, v0'); o('s_mov_b64 exec, vcc')
    o(f'ds_write_b128 v{a}, v[{RK+4}:{RK+7}] offset:{CNT}')
    o('s_mov_b64 exec, -1')

def issue_recs():
    t = T0 + 4
    o(f'v_and_b32 v{VJ0}, 15, v0'); o(f'v_lshlrev_b32 v{VJ0}, 1, v{VJ0}')
    o(f'v_cmp_gt_u32 vcc, s{S_LIM}, v{VJ0}')
    o(f'v_add_u32 v{VJ0}, s{S_RB}, v{VJ0}')
    o(f'v_mov_b32 v{t}, 0x10000')
    o(f'v_cndmask_b32 v{VJ0}, v{t}, v{VJ0}, vcc')
    o(f'v_add_u32 v{VJ1}, 1, v{VJ0}')
    o(f's_lshl_b32 s{S_T}, s{S_RB}, 3')
    for i in range(8):
        m = MK + 4*i
        o(f'v_cmp_gt_u32_sdwa s[{m}:{m+1}], v{OF+i}, v{VJ0} src0_sel:WORD_1 src1_sel:DWORD')
        o(f'v_cmp_gt_u32_sdwa s[{m+2}:{m+3}], v{OF+i}, v{VJ1} src0_sel:WORD_1 src1_sel:DWORD')
        o(f'v_mad_u32_u16 v{t+(i&1)}, v{OF+i}, 8, v{VLB}')
        o(f's_mov_b64 exec, s[{m}:{m+1}]')
        o(f'buffer_load_dwordx4 v[{RD+4*i}:{RD+4*i+3}], v{t+(i&1)}, s[{SWS}:{SWS+3}], s{S_T} offen')
        o('s_mov_b64 exec, -1')
        if i < 7: o(f's_add_u32 s{S_T}, s{S_T}, {CH*8}')

def mf(D, s, B, first):
    o(f'v_mfma_f32_32x32x16_bf16 v[{D}:{D+15}], v[{A+4*s}:{A+4*s+3}], v[{B}:{B+3}], ' + ('0' if first else f'v[{D}:{D+15}]'))
def mf_s(D, s, B, first):
    return f'v_mfma_f32_32x32x16_bf16 v[{D}:{D+15}], v[{A+4*s}:{A+4*s+3}], v[{B}:{B+3}], ' + ('0' if first else f'v[{D}:{D+15}]')
def mfx_s(D, t):
    return f'v_mfma_f32_32x32x8_bf16 v[{D}:{D+15}], v[{AX}:{AX+1}], v[{BX+2*t}:{BX+2*t+1}], 0'
def dma_addr(q): return f'v_mad_u32_u16 v{R+q}, v{R+q}, s{S_128}, v{CD+q}'
def dma(q): return f'buffer_load_dwordx4 v{R+q}, s[{SX}:{SX+3}], 0 offen offset:{1024*q} lds'
def read_e(off): return [f's_mov_b64 exec, s[{S_HI}:{S_HI+1}]', f'ds_read_b32 v{AX}, v{PB} offset:{off}', 's_mov_b64 exec, -1']
def xadr(): return [f's_mov_b64 exec, s[{S_LO}:{S_LO+1}]', f'v_or_b32 v{XADR}, v{XW}, v{CX}', 's_mov_b64 exec, -1']
def tail_ops():
    tr = [f'v_rcp_f32 v{TD+k}, v{TD+k}' for k in range(4)]
    mu = [f'v_mul_f32 v{TN+k}, v{TN+k}, v{TD+k}' for k in range(4)]
    cv = [f'v_cvt_f64_f32 v[{F+2*k}:{F+2*k+1}], v{TN+k}' for k in range(4)]
    ad = [f'ds_add_f64 v{GA+(k&1)}, v[{F+2*k}:{F+2*k+1}] offset:{128+256*(k>>1)}' for k in range(4)]
    mx = [f'v_max3_f32 v{VMAX}, v{VMAX}, v{TD}, v{TD+1}', f'v_max3_f32 v{VMAX}, v{VMAX}, v{TD+2}, v{TD+3}']
    return tr, mu, cv, ad, mx

def mainloop():
    cm('pipeline prologue')
    R2 = F
    o(f'ds_read_b128 v[{R}:{R+3}], v{PA}')
    o(f'ds_read_b128 v[{R2}:{R2+3}], v{PA} offset:1024')
    o(f'ds_read_b32 v{XW}, v{PC}')
    for s in read_e(0): o(s)
    o(f's_mov_b32 m0, s{S_M0A}')
    o('s_waitcnt lgkmcnt(3)')
    for q in range(4): o(dma_addr(q)); o(dma(q))
    o(f's_mov_b32 m0, s{S_M0B}')
    o('s_waitcnt lgkmcnt(2)')
    for q in range(4):
        o(f'v_mad_u32_u16 v{R+q}, v{R2+q}, s{S_128}, v{CD+q}'); o(dma(q))
    o('s_waitcnt lgkmcnt(1)')
    for s in xadr(): o(s)
    for t in range(2): o(f'ds_read_b64_tr_b16 v[{BX+2*t}:{BX+2*t+1}], v{XADR} offset:{64*t}')
    o(f'ds_read_b128 v[{R}:{R+3}], v{PA} offset:2048')
    for k in range(4): o(f'v_mov_b32 v{TN+k}, 0'); o(f'v_mov_b32 v{TD+k}, 1.0')
    o(f'v_mov_b32 v{GA}, {DUMMY}'); o(f'v_mov_b32 v{GA+1}, {DUMMY}')
    o('s_waitcnt vmcnt(4)')
    for s in range(4): o(f'ds_read_b128 v[{A+4*s}:{A+4*s+3}], v{AR+s}')
    o('s_waitcnt lgkmcnt(4)')
    for t in range(2): o(mfx_s(Z[0]+16*t, t))
    for q in range(4): o(dma_addr(q))
    for s in range(4):
        o(f's_waitcnt lgkmcnt({3-s})')
        for t in range(2): mf(Z[0]+16*t, s, BZ+(t*4+s)*4, False)
    o(f's_mov_b32 m0, s{S_M0A}'); o('s_nop 0')
    for q in range(4): o(dma(q))
    o('s_nop 7')
    lab('K2_LOOP')
    for rho in range(2):
        iteration(rho)
        o(f's_sub_u32 s{S_N}, s{S_N}, 1')
        o(f's_cmp_eq_u32 s{S_N}, 0')
        if rho == 0: o('s_cbranch_scc1 K2_LOOPEND')
        else: o('s_cbranch_scc0 K2_LOOP')
    lab('K2_LOOPEND')
    tr, mu, cv, ad, mx = tail_ops()
    for s in mx + tr: o(s)
    o('s_waitcnt lgkmcnt(0)')
    o(f'v_lshl_add_u64 v[{GA}:{GA+1}], v[{GA}:{GA+1}], 0, v[{L8}:{L8+1}]')
    for s in mu + cv + ad: o(s)

def iteration(rho):
    cur, nxt = Z[rho], Z[rho ^ 1]
    ro, go = 1024*rho, 128*rho
    slot = (rho ^ 1) * 32768
    tr, mu, cv, ad, mx = tail_ops()
    mfl = []
    for s in range(4):
        for t in range(2): mfl.append(mf_s(H+16*t, s, BH+(t*4+s)*4, s == 0))
    for t in range(2): mfl.append(mfx_s(nxt+16*t, t))
    for s in range(4):
        for t in range(2): mfl.append(mf_s(nxt+16*t, s, BZ+(t*4+s)*4, False))
    ex = []
    for i in range(8):
        for t in range(2):
            for c in range(2): ex.append(f'v_exp_f32 v{cur+16*t+2*i+c}, v{cur+16*t+2*i+c}')
    chain = []
    for i in range(1, 8):
        for kind in range(3):
            for t in range(2): chain.append((t, i, kind))
    nsc = OPT['nsc'] // 2
    def ops(t, i, kind, w):
        z, h = cur+16*t, H+16*t
        last = i == 7
        def rg(a): return vr(a, 2) if w == 2 else None
        if w == 2:
            if kind == 0: return [f'v_pk_fma_f32 {rg(h)}, {rg(h)}, {rg(z+2*i)}, {rg(h)}']
            if kind == 1: return [f'v_pk_fma_f32 {rg(TN+2*t) if last else rg(h)}, {rg(h+2*i)}, {rg(z)}, {rg(h)}']
            return [f'v_pk_fma_f32 {rg(TD+2*t) if last else rg(z)}, {rg(z)}, {rg(z+2*i)}, {rg(z)}']
        assert not last
        if kind == 0: return [f'v_fmac_f32 v{h+c}, v{h+c}, v{z+2*i+c}' for c in range(2)]
        if kind == 1: return [f'v_fmac_f32 v{h+c}, v{h+2*i+c}, v{z+c}' for c in range(2)]
        return [f'v_fmac_f32 v{z+c}, v{z+c}, v{z+2*i+c}' for c in range(2)]
    sc_chain = sum((ops(*c, 1) for c in chain[:nsc]), [])
    pk = sum((ops(*c, 2) for c in chain[nsc:]), [])
    add1 = [f'v_add_f32 v{cur+16*t+c}, 1.0, v{cur+16*t+c}' for t in range(2) for c in range(2)]
    aread = [f'ds_read_b128 v[{A+4*s}:{A+4*s+3}], v{AR+s} offset:{slot}' for s in range(4)]
    gaps = [[] for _ in range(18)]
    pre = [[] for _ in range(18)]
    post = []
    sched = OPT.get('sched', 0)
    ptradv = [f'v_lshl_add_u64 v[{PA}:{PB}], v[{PA}:{PB}], 0, s[{S_ADV1}:{S_ADV1+1}]',
              f'v_lshl_add_u64 v[{PC}:{PD}], v[{PC}:{PD}], 0, s[{S_ADV2}:{S_ADV2+1}]'] if rho == 1 else []
    gaadd = f'v_lshl_add_u64 v[{GA}:{GA+1}], v[{GA}:{GA+1}], 0, v[{L8}:{L8+1}]'
    garead = f'ds_read_b64 v[{GA}:{GA+1}], v{PD} offset:{go}'
    trr = [f'ds_read_b64_tr_b16 v[{BX+2*t}:{BX+2*t+1}], v{XADR} offset:{64*t}' for t in range(2)]
    m0set = f's_mov_b32 m0, s{S_M0B if slot else S_M0A}'
    head = [f'ds_read_b32 v{XW}, v{PC} offset:{128+go}'] + read_e(1024+ro) + [f'ds_read_b128 v[{R}:{R+3}], v{PA} offset:{3072+ro}']
    if sched == 0:
        gaps[0] += head + mx + tr[0:2]
        gaps[1] += ['s_waitcnt vmcnt(4)', aread[0]] + tr[2:4] + mu[0:2]
        gaps[2] += ['s_waitcnt lgkmcnt(3)'] + xadr() + trr + ex[0:2] + [gaadd]
        gaps[3] += [aread[1]] + ex[2:4] + mu[2:4]
        gaps[4] += ex[4:6] + [cv[0], cv[1], ad[0], ad[1]]
        gaps[5] += [aread[2]] + ex[6:8] + [cv[2], cv[3], ad[2], ad[3], garead]
        gaps[6] += ex[8:10] + add1[0:2]
        gaps[7] += [aread[3]] + ex[10:12] + add1[2:4]
        pre[8] += ['s_waitcnt lgkmcnt(8)']
        gaps[8] += ex[12:14] + [dma_addr(0), dma_addr(1), dma_addr(2)]
        gaps[9] += ex[14:16] + [dma_addr(3)] + ptradv
        pre[12] += ['s_waitcnt lgkmcnt(7)']
        pre[14] += ['s_waitcnt lgkmcnt(4)']
        pre[16] += ['s_waitcnt lgkmcnt(0)', m0set]
        dpos = [16, 16, 17, 17]
    else:
        gaps[0] += head + mx + tr[0:2]
        gaps[1] += ['s_waitcnt vmcnt(4)', aread[0]] + tr[2:4] + mu[0:2]
        gaps[2] += ['s_waitcnt lgkmcnt(3)'] + xadr() + trr + ex[0:2] + [gaadd]
        gaps[3] += [aread[1]] + ex[2:4] + mu[2:4]
        gaps[4] += ex[4:6] + [cv[0], cv[1]]
        gaps[5] += [aread[2]] + ex[6:8] + [cv[2], cv[3]]
        gaps[6] += ex[8:10] + add1[0:2]
        gaps[7] += [aread[3]] + ex[10:12] + add1[2:4]
        pre[8] += ['s_waitcnt lgkmcnt(3)']
        gaps[8] += ex[12:14] + [dma_addr(0), dma_addr(1), dma_addr(2)]
        gaps[9] += ex[14:16] + [dma_addr(3)]
        pre[11] += ['s_waitcnt lgkmcnt(0)', m0set]
        if sched == 1:
            dpos = [11, 12, 13, 14]; apos = [15, 15, 16, 16]
        elif sched == 2:
            dpos = [11, 13, 15, 17]; apos = [12, 12, 14, 14]
        elif sched == 3:
            dpos = [18, 18, 18, 18]; apos = [12, 13, 14, 15]
        for k_ in range(4): gaps[apos[k_]] += [ad[k_]]
        gaps[16] += [garead]
        gaps[17] += ptradv
    rest = ex[16:]
    k = 0
    for gi in range(10, 18):
        gaps[gi] += rest[2*(gi-10):2*(gi-10)+2]
        if gi >= 11:
            e_ = (len(sc_chain) * (gi - 10)) // 7
            gaps[gi] += sc_chain[k:e_]; k = e_
    for q in range(4):
        if dpos[q] < 18: gaps[dpos[q]] += [dma(q)]
        else: pk.insert(4 + 8*q, dma(q))
    abl = str(OPT.get('abl', ''))
    def keep(s):
        if 'novm' in abl and (s.startswith('buffer_') or 'vmcnt' in s): return False
        if 'noadd' in abl and s.startswith('ds_add'): return False
        if 'nods' in abl and (s.startswith('ds_') or 'lgkmcnt' in s): return False
        if 'noexec' in abl and 'exec' in s: return False
        if 'nomfma' in abl and s.startswith('v_mfma'): return False
        if 'nopk' in abl and s.startswith('v_pk'): return False
        if 'noexp' in abl and s.startswith('v_exp'): return False
        return True
    for j in range(18):
        for s in pre[j] + [mfl[j]] + gaps[j]:
            if keep(s): o(s)
    if OPT['prio']: o('s_setprio 3')
    for s in pk:
        if keep(s): o(s)
    if OPT['prio']: o('s_setprio 0')

def safeloop():
    lab('K2_SAFE')
    o(f's_mov_b32 m0, s{S_M0A}')
    o(f's_mov_b32 s{S_T}, 1024'); o(f's_mov_b32 s{S_T2}, 128')
    lab('K2_SAFEL')
    o(f'ds_read_b128 v[{R}:{R+3}], v{PA}')
    o(f'ds_read_b32 v{XW}, v{PC}')
    for s in read_e(0): o(s)
    o(f'ds_read_b64 v[{GA}:{GA+1}], v{PD}')
    o('s_waitcnt lgkmcnt(0)')
    for q in range(4): o(dma_addr(q)); o(dma(q))
    for s in xadr(): o(s)
    for t in range(2): o(f'ds_read_b64_tr_b16 v[{BX+2*t}:{BX+2*t+1}], v{XADR} offset:{64*t}')
    o(f'v_lshl_add_u64 v[{GA}:{GA+1}], v[{GA}:{GA+1}], 0, v[{L8}:{L8+1}]')
    o(f'v_add_u32 v{PA}, s{S_T}, v{PA}'); o(f'v_add_u32 v{PB}, s{S_T}, v{PB}')
    o(f'v_add_u32 v{PC}, s{S_T2}, v{PC}'); o(f'v_add_u32 v{PD}, s{S_T2}, v{PD}')
    o('s_waitcnt vmcnt(0)')
    for s in range(4): o(f'ds_read_b128 v[{A+4*s}:{A+4*s+3}], v{AR+s}')
    o('s_waitcnt lgkmcnt(0)')
    z = Z[0]
    for t in range(2): o(mfx_s(z+16*t, t))
    for s in range(4):
        for t in range(2): mf(z+16*t, s, BZ+(t*4+s)*4, False)
    for s in range(4):
        for t in range(2): mf(H+16*t, s, BH+(t*4+s)*4, s == 0)
    o('s_nop 15')
    for k in range(32): o(f'v_exp_f32 v{z+k}, v{z+k}')
    for k in range(32): o(f'v_add_f32 v{z+k}, 1.0, v{z+k}')
    for k in range(32): o(f'v_rcp_f32 v{z+k}, v{z+k}')
    for i in range(8):
        for t in range(2):
            for c in range(2):
                r = 16*t + 2*i + c
                o(f'v_{"mul" if i == 0 else "fmac"}_f32 v{TN+2*t+c}, v{H+r}, v{z+r}')
    tr, mu, cv, ad, mx = tail_ops()
    for s in cv + ad: o(s)
    o(f's_sub_u32 s{S_N}, s{S_N}, 1'); o(f's_cmp_eq_u32 s{S_N}, 0'); o('s_cbranch_scc0 K2_SAFEL')

def epilogue():
    a, b, c = T0, T0+1, T0+2
    Y = 96
    o(f'v_lshrrev_b32 v{a}, 5, v0')
    o(f'v_mul_u32_u24 v{b}, 640, v{a}'); o(f'v_lshl_add_u32 v{b}, v{L8}, 1, v{b}'); o(f'v_add_u32 v{b}, {NODE0+128}, v{b}')
    for k in range(6): o(f'ds_read_b128 v[{Y+4*k}:{Y+4*k+3}], v{b} offset:{k*16*640}')
    o(f'ds_read_b128 v[{Y+24}:{Y+27}], v{b} offset:{6*16*640}')
    o(f's_mul_i32 s{S_T}, s{S_SB}, {NB*128}')
    o(f'v_lshl_add_u32 v{c}, v0, 2, s{S_T}')
    o(f's_mov_b32 s{S_T2}, 0x207')
    o(f's_mov_b32 s{MK}, {f2u(2.0**120):#x}')
    o(f'v_cmp_lt_f32 s[{MK+2}:{MK+3}], s{MK}, v{VMAX}')
    for k in range(7):
        if k == 6:
            o(f's_cmp_lg_u32 s{S_W}, 0'); o('s_cbranch_scc1 K2_EP_DONE')
        y = Y + 4*k
        o(f's_waitcnt lgkmcnt({6-k})')
        o(f'v_cvt_f32_f64 v{y}, v[{y}:{y+1}]'); o(f'v_cvt_f32_f64 v{y+1}, v[{y+2}:{y+3}]')
        o(f'v_mul_f32 v{y+2}, s{S_NL2}, v{y}'); o(f'v_mul_f32 v{y+3}, s{S_NL2}, v{y+1}')
        o(f'v_exp_f32 v{y+2}, v{y+2}'); o(f'v_exp_f32 v{y+3}, v{y+3}')
        o(f'v_add_f32 v{a}, v{y}, v{y+1}')
        o(f'v_add_f32 v{y+2}, 1.0, v{y+2}'); o(f'v_add_f32 v{y+3}, 1.0, v{y+3}')
        o(f'v_rcp_f32 v{y+2}, v{y+2}'); o(f'v_rcp_f32 v{y+3}, v{y+3}')
        o(f'v_cmp_class_f32 vcc, v{a}, s{S_T2}')
        o(f'v_mul_f32 v{y}, v{y}, v{y+2}'); o(f'v_mul_f32 v{y+1}, v{y+1}, v{y+3}')
        o(f's_or_b64 s[{MK+2}:{MK+3}], s[{MK+2}:{MK+3}], vcc')
        o(f'v_cvt_pk_bf16_f32 v{y}, v{y}, v{y+1}')
        o(f'buffer_store_dword v{y}, v{c}, s[{SOUT}:{SOUT+3}], 0 offen offset:{(k&1)*2048}')
        if k & 1: o(f'v_add_u32 v{c}, 4096, v{c}')
    lab('K2_EP_DONE')
    o(f'v_mov_b32 v{b}, {FLG+4}')
    o(f's_mov_b64 exec, s[{MK+2}:{MK+3}]')
    o(f'ds_write_b32 v{b}, v{ONE}')
    o('s_mov_b64 exec, -1')
    o('s_waitcnt lgkmcnt(0)')
    o('s_barrier')
    o(f'ds_read_b32 v{b}, v{b}')
    o('s_waitcnt lgkmcnt(0)')
    o(f'v_readfirstlane_b32 s{S_T}, v{b}')
    if OPT.get('abl'): o(f's_mov_b32 s{S_T}, 0')
    o(f's_andn2_b32 s{S_T}, s{S_T}, s{S_SAFE}')
    o('s_cbranch_scc0 K2_DONE')
    o(f's_mov_b32 s{S_SAFE}, 1')
    o('s_waitcnt vmcnt(0)')
    o('s_barrier')
    o('s_branch K2_TOP')
    lab('K2_DONE')
    if OPT.get('twice'):
        o('s_cmp_eq_u32 s97, 0'); o('s_cbranch_scc0 K2_DONE2')
        o('s_mov_b32 s97, 1'); o('s_waitcnt vmcnt(0)'); o('s_barrier'); o('s_branch K2_TOP')
        lab('K2_DONE2')

def kd(name, vgpr, sgpr):
    L.append(f'.amdhsa_kernel {name}')
    L.append(f'  .amdhsa_next_free_vgpr {vgpr}')
    L.append(f'  .amdhsa_next_free_sgpr {sgpr}')
    L.append(f'  .amdhsa_accum_offset {(vgpr+3)//4*4}')
    L.append('  .amdhsa_group_segment_fixed_size 0')
    L.append('  .amdhsa_kernarg_size 80')
    L.append('  .amdhsa_user_sgpr_count 2')
    L.append('  .amdhsa_user_sgpr_kernarg_segment_ptr 1')
    L.append('  .amdhsa_system_sgpr_workgroup_id_x 1')
    L.append('  .amdhsa_float_denorm_mode_32 3')
    L.append('.end_amdhsa_kernel')

hdr = open('cdna_kernels/' + NAME + '.s.ref').read().split('\n')
for h in hdr:
    if h.startswith(';') and '@launch' not in h and 'Override' not in h and 'grid=ceil' not in h: L.append(h)
L.append(f'; @launch kernel=part_kernel grid=({512 if OPT.get("dummyt") else 256},1,1) block=(832,1,1) lds={K1_LDS}')
L.append(f'; @launch kernel={NAME}_kernel grid=(256,1,1) block=(512,1,1) lds={K2_LDS}')
L.append('.amdgcn_target "amdgcn-amd-amdhsa--gfx950"')
L.append('.text')
L.append('.globl part_kernel'); L.append(f'.globl {NAME}_kernel')
k1(); k2()
L.append('.section .rodata,"a"'); L.append('.p2align 6')
kd('part_kernel', 48, 102)
L.append('.p2align 6')
kd(f'{NAME}_kernel', 256, 102)
out = OPT.get('out', 'cdna_kernels/' + NAME + '.s')
open(out, 'w').write('\n'.join(L) + '\n')
```

```python
import sys, struct
NAME = "gather_scatter__edge_featured_mpnn_egc__graph"
N = 25000; E = 800000
NB = 196
CH = 3136
WS_OFFT = 0x700000
WS_TAB = 0x1000000; TABSZ = N * 128; TABSTR = 0x320000
LOG2E = 1.4426950408889634
ROW = 260
def f2u(f): return struct.unpack('<I', struct.pack('<f', f))[0]
OPT = dict(stamp=0, k1sc='', tsc='', safe=0)
for a in sys.argv[1:]:
    if '=' in a:
        k, v = a.split('=', 1)
        try: v = int(v)
        except ValueError: pass
        OPT[k] = v
L = []
def o(s): L.append('    ' + s)
def lab(s): L.append(s + ':')
def cm(s): L.append('    ; ' + s)
def r2(a): return f'v[{a}:{a+1}]'
def r4(a): return f'v[{a}:{a+3}]'
def r16(a): return f'v[{a}:{a+15}]'
def s2(a): return f's[{a}:{a+1}]'
def s4(a): return f's[{a}:{a+3}]'
def srd(d, b, size):
    o(f's_mov_b64 {s2(d)}, {s2(b)}')
    o(f's_mov_b32 s{d+2}, {size}'); o(f's_mov_b32 s{d+3}, 0x20000')
def scan(v):
    for sh in (1, 2, 4, 8):
        o('s_nop 1')
        o(f'v_add_u32_dpp v{v}, v{v}, v{v} row_shr:{sh} row_mask:0xf bank_mask:0xf bound_ctrl:0')
    o('s_nop 1')
    o(f'v_add_u32_dpp v{v}, v{v}, v{v} row_bcast:15 row_mask:0xa bank_mask:0xf')
    o('s_nop 1')
    o(f'v_add_u32_dpp v{v}, v{v}, v{v} row_bcast:31 row_mask:0xc bank_mask:0xf')
def stamp(idx, kbase=84):
    if not OPT['stamp']: return
    o('s_memrealtime s[98:99]' if OPT['stamp'] == 1 else 's_memtime s[98:99]')
    o('s_waitcnt lgkmcnt(0)')
    o(f's_mov_b32 s{kbase+idx}, s98')
def emit_stamps(n, wsreg, off, tag, kbase=84):
    o(f'v_cmp_eq_u32 vcc, {OPT.get("stid", 0)}, v0'); o('s_mov_b64 exec, vcc'); o(f's_cbranch_execz {tag}_NOST')
    srd(80, wsreg, 0x1000000)
    o('s_lshl_b32 s97, s2, 6'); o(f's_add_u32 s97, s97, {off}')
    o('v_mov_b32 v1, 0')
    for i in range(n):
        o(f'v_mov_b32 v2, s{kbase+i}')
        o(f'buffer_store_dword v2, v1, s[80:83], s97 offen offset:{4*i}')
        o('s_waitcnt vmcnt(0)')
    lab(f'{tag}_NOST')

def mm(D, A, B, first): return f'v_mfma_f32_32x32x16_bf16 {r16(D)}, {r4(A)}, {r4(B)}, ' + ('0' if first else r16(D))
def tile_addr(vl, ar, tra, t0, t1, sbase_x, wbase):
    o(f'v_and_b32 v{t0}, 31, v{vl}'); o(f'v_lshl_add_u32 v{t0}, v{t0}, 7, s{sbase_x}')
    o(f'v_bfe_u32 v{t1}, v{vl}, 1, 3'); o(f'v_lshrrev_b32 v{tra}, 5, v{vl}'); o(f'v_xor_b32 v{t1}, v{t1}, v{tra}')
    o(f'v_lshl_add_u32 v{ar}, v{t1}, 4, v{t0}')
    for s in range(1, 4):
        o(f'v_xor_b32 v{ar+s}, {32*s}, v{ar}')
    o(f'v_lshlrev_b32 v{tra}, 9, v{tra}'); o(f'v_bfe_u32 v{t0}, v{vl}, 2, 2'); o(f'v_lshl_add_u32 v{tra}, v{t0}, 6, v{tra}')
    o(f'v_bfe_u32 v{t0}, v{vl}, 4, 1'); o(f'v_lshl_add_u32 v{tra}, v{t0}, 5, v{tra}')
    o(f'v_and_b32 v{t0}, 3, v{vl}'); o(f'v_lshl_add_u32 v{tra}, v{t0}, 3, v{tra}')
    o(f'v_add_u32 v{tra}, {wbase}, v{tra}')
def tile_mm(ar, tra, A, W, D, off0, off1):
    for s in range(4): o(f'ds_read_b128 {r4(A+4*s)}, v{ar+s}')
    for m, off in ((0, off0), (1, off1)):
        for s in range(4):
            for hf in range(2):
                o(f'ds_read_b64_tr_b16 {r2(W+16*m+4*s+2*hf)}, v{tra} offset:{off+s*1024+hf*256}')
        if m == 0: o('s_waitcnt lgkmcnt(4)')
    for m in range(2):
        for s in range(4):
            n = 14 - 8*m - 2*s
            if n < 12: o(f's_waitcnt lgkmcnt({n})')
            o(mm(D+16*m, A+4*s, W+16*m+4*s, s == 0))
def tile_pack(D, snl2):
    for k in range(8): o(f'v_pk_mul_f32 {r2(D+2*k)}, {r2(D+2*k)}, {s2(snl2)}')
    for k in range(16): o(f'v_cvt_pk_bf16_f32 v{D+k}, v{D+k}, v{D+16+k}')
def rowof(r): return (r & 3) + 8 * (r >> 2)

K1_RECS = 1024; K1_XS = 26624; K1_WS = K1_XS + 16384; K1_LDS = K1_WS + 16384
def k1():
    L.append('.p2align 8'); L.append('.type part_kernel,@function'); lab('part_kernel')
    o('s_cmp_ge_u32 s2, 256'); o('s_cbranch_scc1 K1_END')
    o('s_load_dwordx8 s[4:11], s[0:1], 0')
    o('s_load_dwordx4 s[12:15], s[0:1], 40')
    o('s_load_dwordx2 s[36:37], s[0:1], 72')
    o('v_readfirstlane_b32 s38, v0')
    o('s_and_b32 s3, s2, 7'); o('s_lshl_b32 s3, s3, 5'); o('s_lshr_b32 s39, s2, 3'); o('s_add_u32 s3, s3, s39')
    o('s_lshr_b32 s38, s38, 6')
    stamp(0)
    o('s_cmp_ge_u32 s38, 7'); o('s_cbranch_scc1 K1_TAB')
    cm('---- partition waves')
    o(f's_mul_i32 s39, s3, {CH//4}')
    o('v_add_u32 v1, s39, v0')
    o(f'v_cmp_gt_u32 vcc, {CH//8}, v0')
    o(f's_mov_b32 s40, {E//4}'); o(f's_mov_b32 s41, {E//4 - CH//8}')
    o('v_cmp_gt_u32 s[42:43], s40, v1'); o('v_cmp_gt_u32 s[44:45], s41, v1')
    o('v_lshlrev_b32 v2, 4, v1'); o('v_lshlrev_b32 v3, 3, v1')
    o('s_and_b64 s[42:43], s[42:43], vcc'); o('s_and_b64 s[44:45], s[44:45], vcc')
    o('v_lshlrev_b32 v4, 2, v0'); o('v_mov_b32 v5, 0')
    o('v_cmp_gt_u32 vcc, 128, v0'); o('s_mov_b64 exec, vcc')
    o('ds_write_b32 v4, v5')
    o(f's_movk_i32 s40, {CH*2}')
    o('s_waitcnt lgkmcnt(0)')
    srd(16, 10, E*4)
    o('s_mov_b64 exec, s[42:43]'); o('buffer_load_dwordx4 v[8:11], v2, s[16:19], 0 offen')
    o('s_mov_b64 exec, s[44:45]'); o('buffer_load_dwordx4 v[12:15], v2, s[16:19], s40 offen')
    srd(20, 8, E*4); srd(24, 6, E*2)
    o('buffer_load_dwordx4 v[20:23], v2, s[20:23], s40 offen')
    o(f'buffer_load_dwordx2 v[26:27], v3, s[24:27], 0 offen offset:{CH}')
    o('s_mov_b64 exec, s[42:43]')
    o('buffer_load_dwordx4 v[16:19], v2, s[20:23], 0 offen')
    o('buffer_load_dwordx2 v[24:25], v3, s[24:27], 0 offen')
    srd(28, 36, WS_OFFT + 128*1024)
    o(f's_mov_b32 s46, {-NB & 0xffffffff:#x}'); o('s_mov_b32 s47, 0xffff0000')
    o('v_mov_b32 v5, 1')
    o('s_barrier')
    RC = 32; BA = 48; RK = 56
    for g in range(2):
        o(f's_waitcnt vmcnt({5-g})')
        if g == 0: stamp(1)
        o(f's_mov_b64 exec, {s2(42+2*g)}')
        for i in range(4*g, 4*g+4):
            o(f'v_mul_u32_u24 v{BA+i}, 21400, v{8+i}')
            o(f'v_lshrrev_b32 v{BA+i}, 22, v{BA+i}')
            o(f'v_mad_i32_i24 v{RC+2*i+1}, v{BA+i}, s46, v{8+i}')
            o(f'v_lshlrev_b32 v{BA+i}, 2, v{BA+i}')
            o(f'ds_add_rtn_u32 v{RK+i}, v{BA+i}, v5')
    o('s_mov_b64 exec, -1')
    for i in range(8): o(f'v_mul_u32_u24 v{RC+2*i+1}, {ROW}, v{RC+2*i+1}')
    o('v_and_b32 v6, 63, v0'); o('v_lshlrev_b32 v6, 3, v6')
    o('s_waitcnt lgkmcnt(0)')
    o('s_barrier')
    o('ds_read_b64 v[28:29], v6')
    o('s_waitcnt vmcnt(0)')
    for i in range(8):
        e = 24 + i//2
        if i & 1: o(f'v_and_or_b32 v{RC+2*i}, v{e}, s47, v{16+i}')
        else: o(f'v_lshl_or_b32 v{RC+2*i}, v{e}, 16, v{16+i}')
        o(f'v_add_u32 v{RC+2*i}, 1, v{RC+2*i}')
    o('s_waitcnt lgkmcnt(0)')
    o('v_add_u32 v7, v28, v29'); o('v_mov_b32 v30, v7')
    scan(30)
    o('v_sub_u32 v30, v30, v7'); o('v_add_u32 v31, v30, v28')
    o('ds_write_b64 v6, v[30:31] offset:512')
    for g in range(2):
        o(f's_mov_b64 exec, {s2(42+2*g)}')
        for i in range(4*g, 4*g+4): o(f'ds_read_b32 v{BA+i}, v{BA+i} offset:512')
    for i in range(8):
        if i % 4 == 0: o(f's_mov_b64 exec, {s2(42+2*(i//4))}')
        o('s_waitcnt lgkmcnt(7)')
        o(f'v_add_lshl_u32 v{BA+i}, v{BA+i}, v{RK+i}, 3')
        o(f'ds_write_b64 v{BA+i}, {r2(RC+2*i)} offset:{K1_RECS}')
    o('s_mov_b64 exec, -1')
    o('s_cmp_ge_u32 s38, 2'); o('s_cbranch_scc1 K1_COPY')
    o('v_lshlrev_b32 v6, 8, v6')
    o('s_lshl_b32 s39, s38, 10'); o('s_lshl_b32 s40, s3, 2'); o('s_add_u32 s39, s39, s40'); o(f's_add_u32 s39, s39, {WS_OFFT}')
    o('v_lshl_or_b32 v7, v28, 16, v30')
    o('s_cmp_eq_u32 s38, 0'); o('s_cbranch_scc1 K1_OFF0')
    o('v_lshl_or_b32 v7, v29, 16, v31')
    lab('K1_OFF0')
    o(f'buffer_store_dword v7, v6, s[28:31], s39 offen {OPT["k1sc"]}')
    o('s_branch K1_COPY')

    lab('K1_TAB')
    cm('---- table waves: mt = tw&3, t = tw>>2')
    o('s_sub_u32 s38, s38, 7')
    o('s_and_b32 s39, s38, 3'); o('s_lshr_b32 s40, s38, 2')
    o('v_and_b32 v1, 63, v0')
    o('s_mul_i32 s41, s3, 98'); o('s_lshl_b32 s42, s39, 5'); o('s_add_u32 s41, s41, s42')
    o('s_lshl_b32 s42, s40, 4'); o('s_add_u32 s42, s42, s41')
    o('v_lshrrev_b32 v2, 3, v1'); o('v_add_lshl_u32 v2, v2, s42, 7')
    o('v_lshrrev_b32 v3, 4, v1'); o('v_and_b32 v4, 7, v1'); o('v_xor_b32 v3, v3, v4')
    o('v_lshl_add_u32 v2, v3, 4, v2'); o('v_xor_b32 v3, 64, v2')
    o('v_lshrrev_b32 v4, 2, v1'); o('v_lshlrev_b32 v4, 7, v4'); o('v_and_b32 v5, 3, v1'); o('v_lshl_add_u32 v4, v5, 4, v4')
    o('s_lshl_b32 s43, s39, 12'); o(f's_add_u32 s43, s43, {K1_XS}')
    o('s_lshl_b32 s44, s40, 11'); o('s_add_u32 s44, s44, s43')
    o('s_and_b32 s45, s38, 1'); o('s_lshl_b32 s45, s45, 12'); o('s_bfe_u32 s46, s38, 0x10001'); o('s_lshl_b32 s46, s46, 6'); o('s_add_u32 s45, s45, s46')
    o('s_lshl_b32 s46, s38, 11'); o(f's_add_u32 s46, s46, {K1_WS}')
    o('s_waitcnt lgkmcnt(0)')
    srd(16, 4, N*128)
    o('s_mov_b32 m0, s44')
    o('s_cmp_eq_u32 s40, 0')
    o('buffer_load_dwordx4 v2, s[16:19], 0 offen lds')
    o('buffer_load_dwordx4 v3, s[16:19], 0 offen offset:1024 lds')
    o('s_cselect_b32 s20, s14, s12'); o('s_cselect_b32 s21, s15, s13'); o('s_cselect_b32 s47, 8192, 0')
    o(f's_mov_b32 s22, 16384'); o('s_mov_b32 s23, 0x20000')
    o('s_add_u32 s45, s45, s47')
    o('s_mov_b32 m0, s46'); o('s_add_u32 s47, s45, 1024')
    o('buffer_load_dwordx4 v4, s[20:23], s45 offen lds')
    o('buffer_load_dwordx4 v4, s[20:23], s47 offen offset:1024 lds')
    o('s_barrier')
    AR = 8; TRA = 12; A = 16; W = 32; D = 64
    tile_addr(1, AR, TRA, 2, 3, 43, K1_WS)
    o('s_lshl_b32 s44, s40, 12'); o(f'v_add_u32 v{TRA}, s44, v{TRA}')
    srd(28, 36, WS_OFFT + 128*1024)
    o(f's_mul_i32 s44, s40, {TABSTR}'); o(f's_add_u32 s44, s44, {WS_TAB}')
    o('s_add_u32 s24, s36, s44'); o('s_addc_u32 s25, s37, 0'); o(f's_mov_b32 s26, {TABSZ}'); o('s_mov_b32 s27, 0x20000')
    o(f's_mov_b32 s32, {f2u(-LOG2E):#x}'); o('s_mov_b32 s33, s32')
    o('v_lshrrev_b32 v2, 5, v1'); o('v_lshl_add_u32 v2, v2, 2, s41'); o('v_lshlrev_b32 v2, 7, v2')
    o('v_and_b32 v3, 31, v1'); o('v_lshl_add_u32 v2, v3, 2, v2')
    o('s_waitcnt vmcnt(0)')
    o('s_barrier')
    tile_mm(AR, TRA, A, W, D, 0, 8192)
    o('s_nop 7')
    tile_pack(D, 32)
    o('s_cmp_eq_u32 s39, 3'); o('s_cbranch_scc1 K1_TAB3')
    for r in range(16): o(f'buffer_store_dword v{D+r}, v2, s[24:27], 0 offen offset:{rowof(r)*128} {OPT["tsc"]}')
    o('s_branch K1_COPY')
    lab('K1_TAB3')
    o('s_mov_b32 exec_hi, 0')
    for r in range(2): o(f'buffer_store_dword v{D+r}, v2, s[24:27], 0 offen offset:{rowof(r)*128} {OPT["tsc"]}')
    o('s_mov_b64 exec, -1')

    lab('K1_COPY')
    o('v_lshlrev_b32 v4, 4, v0')
    o(f's_mul_i32 s39, s3, {CH*8}')
    o(f's_add_u32 s40, s39, {960*16}')
    o(f'v_cmp_gt_u32 vcc, {CH//2 - 960}, v0')
    o('s_waitcnt lgkmcnt(0)')
    o('s_barrier')
    o(f'ds_read_b128 v[8:11], v4 offset:{K1_RECS}')
    o('s_mov_b64 exec, vcc')
    o(f'ds_read_b128 v[12:15], v4 offset:{K1_RECS+960*16}')
    o('s_mov_b64 exec, -1')
    o('s_waitcnt lgkmcnt(1)')
    o(f'buffer_store_dwordx4 v[8:11], v4, s[28:31], s39 offen {OPT["k1sc"]}')
    o('s_mov_b64 exec, vcc')
    o('s_waitcnt lgkmcnt(0)')
    o(f'buffer_store_dwordx4 v[12:15], v4, s[28:31], s40 offen {OPT["k1sc"]}')
    if OPT['stamp']:
        o('s_mov_b64 exec, -1')
        stamp(2); o('s_waitcnt vmcnt(0)'); stamp(3)
        emit_stamps(4, 36, 0x800000, 'K1')
    lab('K1_END'); o('s_endpgm')

LISTS = 0; BINS = 52224; FLG = BINS + 256; ZEND = 52736
ORDER = ZEND; PB = 54528; ACC = PB + 200*128; SPILL = ACC + 25*1024; K2_LDS = SPILL + 16*1024
XS = ACC; WST = ACC + 7*4096
assert ORDER + 64*64 < K2_LDS and ORDER + 1600 <= PB and PB % 256 == 0 and ACC % 256 == 0 and WST + 8192 <= K2_LDS
VL = 1; CD = 2; PTR = 3; AI = 4; CC = 6; VMAX = 10; LA8 = 11; C0 = 12; NN = 20; DD = 24; TMP = 28
LC16 = 32; L16 = 33; VB = 34; VLEN = 35; RB = 36; U = (40, 56); DB = 72
OF = 40; RDA = 44; RDB = 60; RK = 76; VJ = 92; VLB = 96; FOUR = 97; AD = 98
PAR = 36; PTRA = 28; PA = 40; PW = 56; PD = 88
NVG = 120
S_W = 3; SX = 8; SWS = 12; SOUT = 16; SG = 20; ST = 24
S_BK = 32; S_HF = 33; S_SAFE = 34; S_T = 35; S_T2 = 36; S_T3 = 37; S_128 = 38; S_Q = 39
S_NL2 = 40; S_N = 42; S_J = 43; S_OFF = 44; S_REM = 45; S_BAD = 46
MK = 48
def k2():
    L.append('.p2align 8'); L.append(f'.type {NAME}_kernel,@function'); lab(f'{NAME}_kernel')
    o('s_cmp_ge_u32 s2, 256'); o('s_cbranch_scc1 K2_END')
    o(f's_mov_b32 s{S_SAFE}, {OPT["safe"]}')
    lab('K2_TOP')
    o('s_load_dwordx2 s[4:5], s[0:1], 72')
    o('s_load_dwordx2 s[6:7], s[0:1], 0')
    o('s_load_dwordx8 s[48:55], s[0:1], 32')
    o(f'v_readfirstlane_b32 s{S_W}, v0')
    o(f's_and_b32 s{S_BK}, s2, 3'); o(f's_lshl_b32 s{S_BK}, s{S_BK}, 5'); o(f's_lshr_b32 s{S_T}, s2, 3'); o(f's_add_u32 s{S_BK}, s{S_BK}, s{S_T}')
    o(f's_bfe_u32 s{S_HF}, s2, 0x10002')
    o(f's_lshr_b32 s{S_W}, s{S_W}, 6')
    stamp(0)
    o(f'v_and_b32 v{OF}, 0x3f0, v0')
    o(f's_lshl_b32 s{S_T}, s{S_BK}, 10'); o(f's_add_u32 s{S_T}, s{S_T}, {WS_OFFT}')
    o(f'v_lshlrev_b32 v{TMP}, 4, v0')
    for k in range(4): o(f'v_mov_b32 v{RK+k}, 0')
    o('s_waitcnt lgkmcnt(0)')
    srd(SWS, 4, WS_OFFT + 128*1024)
    o(f'v_mul_u32_u24 v{VLB}, {CH*8*4//16}, v{OF}')
    o(f'buffer_load_dwordx4 {r4(OF)}, v{OF}, {s4(SWS)}, s{S_T} offen')
    for k in range(3): o(f'ds_write_b128 v{TMP}, {r4(RK)} offset:{16384*k}')
    o(f'v_cmp_gt_u32 vcc, {(ZEND-49152)//16}, v0'); o('s_mov_b64 exec, vcc')
    o(f'ds_write_b128 v{TMP}, {r4(RK)} offset:49152')
    o('s_mov_b64 exec, -1')
    o(f'v_and_b32 v{VL}, 63, v0')
    srd(SG, 52, 129*128)
    o(f'v_and_b32 v{CD}, 7, v{VL}')
    o(f'v_lshlrev_b32 v{TMP+1}, 3, v{CD}')
    o(f's_lshl_b32 s{S_T}, s{S_HF}, 6'); o(f's_add_u32 s{S_T2}, s{S_T}, 16384')
    o(f'buffer_load_dwordx2 {r2(CC+2)}, v{TMP+1}, {s4(SG)}, s{S_T2} offen')
    o(f's_cmp_ge_u32 s{S_W}, 8'); o('s_cbranch_scc1 K2_XDMA')
    cm('waves 0..7: weight piece (mat = w>>2, rows 16*(w&3)+(l>>2))')
    o(f'v_lshrrev_b32 v{TMP}, 2, v{VL}'); o(f'v_lshlrev_b32 v{TMP}, 7, v{TMP}'); o(f'v_and_b32 v{TMP+1}, 3, v{VL}'); o(f'v_lshl_add_u32 v{TMP}, v{TMP+1}, 4, v{TMP}')
    o(f's_cmp_lt_u32 s{S_W}, 4')
    o(f's_cselect_b32 s28, s52, s48'); o(f's_cselect_b32 s29, s53, s49'); o('s_mov_b32 s30, 8192'); o('s_mov_b32 s31, 0x20000')
    o(f's_lshl_b32 s{S_T2}, s{S_W}, 10'); o(f's_add_u32 m0, s{S_T2}, {WST}')
    o(f's_and_b32 s{S_T2}, s{S_W}, 3'); o(f's_lshl_b32 s{S_T2}, s{S_T2}, 11'); o(f's_add_u32 s{S_T2}, s{S_T2}, s{S_T}')
    o(f'buffer_load_dwordx4 v{TMP}, s[28:31], s{S_T2} offen lds')
    consts()
    o('s_waitcnt vmcnt(2)')
    o('s_branch K2_RECS')
    lab('K2_XDMA')
    cm('waves 9..15: own x tile w-9 (wave 8 loads nothing)')
    srd(SX, 6, N*128)
    o(f's_cmp_eq_u32 s{S_W}, 8'); o('s_cselect_b64 exec, 0, -1')
    o(f's_sub_u32 s{S_T2}, s{S_W}, 9'); o(f's_max_i32 s{S_T2}, s{S_T2}, 0')
    o(f's_lshl_b32 s{S_T3}, s{S_T2}, 12'); o(f's_add_u32 m0, s{S_T3}, {XS}')
    o(f's_lshl_b32 s{S_T2}, s{S_T2}, 5'); o(f's_mul_i32 s{S_T3}, s{S_BK}, {NB}'); o(f's_add_u32 s{S_T2}, s{S_T2}, s{S_T3}')
    o('s_cbranch_execz K2_XSKIP')
    o(f'v_lshrrev_b32 v{TMP}, 3, v{VL}'); o(f'v_add_lshl_u32 v{TMP}, v{TMP}, s{S_T2}, 7')
    o(f'v_lshrrev_b32 v{TMP+1}, 4, v{VL}'); o(f'v_xor_b32 v{TMP+1}, v{TMP+1}, v{CD}')
    o(f'v_lshl_add_u32 v{TMP}, v{TMP+1}, 4, v{TMP}'); o(f'v_xor_b32 v{TMP+1}, 64, v{TMP}')
    for q in range(4): o(f'buffer_load_dwordx4 v{TMP+(q&1)}, {s4(SX)}, 0 offen offset:{1024*q} lds')
    consts()
    o('s_waitcnt vmcnt(5)')
    o('s_branch K2_RECS')
    lab('K2_XSKIP')
    o('s_mov_b64 exec, -1')
    consts()
    o('s_waitcnt vmcnt(1)')
    lab('K2_RECS')
    stamp(1)
    o(f's_cmp_eq_u32 s{S_SAFE}, 0'); o('s_cbranch_scc1 K2_NS1')
    for k in range(4): o(f'v_mov_b32 v{OF+k}, 0')
    lab('K2_NS1')
    for i in range(4): o(f'v_mad_u32_u16 v{AD+i}, v{OF+i}, 8, v{VLB}')
    o(f's_mov_b32 s{S_T}, 0')
    for i in range(4):
        m = MK + 16 + 4*i
        o(f'v_cmp_gt_u32_sdwa {s2(m)}, v{OF+i}, v{VJ+2} src0_sel:WORD_1 src1_sel:DWORD')
        o(f's_mov_b64 exec, {s2(m)}'); o(f's_cbranch_execz K2_NOB{i}')
        o(f'v_cmp_gt_u32_sdwa {s2(m+2)}, v{OF+i}, v{VJ+3} src0_sel:WORD_1 src1_sel:DWORD')
        o(f'buffer_load_dwordx4 {r4(RDB+4*i)}, v{AD+i}, {s4(SWS)}, s{S_T} offen offset:256')
        lab(f'K2_NOB{i}')
        o('s_mov_b64 exec, -1')
        if i < 3: o(f's_add_u32 s{S_T}, s{S_T}, {CH*8}')
    for i in range(4):
        m = MK + 4*i
        o(f'v_cmp_gt_u32_sdwa {s2(m)}, v{OF+i}, v{VJ} src0_sel:WORD_1 src1_sel:DWORD')
        o(f'v_cmp_gt_u32_sdwa {s2(m+2)}, v{OF+i}, v{VJ+1} src0_sel:WORD_1 src1_sel:DWORD')
    o(f's_mov_b32 s{S_T}, 0')
    for i in range(4):
        o(f's_mov_b64 exec, {s2(MK+4*i)}')
        o(f'buffer_load_dwordx4 {r4(RDA+4*i)}, v{AD+i}, {s4(SWS)}, s{S_T} offen')
        if i < 3: o(f's_add_u32 s{S_T}, s{S_T}, {CH*8}')
    o('s_mov_b64 exec, -1')
    o(f'v_max3_u32 v{TMP}, v{OF}, v{OF+1}, v{OF+2}'); o(f'v_max_u32 v{TMP}, v{TMP}, v{OF+3}')
    o(f'v_cmp_lt_u32 {s2(S_BAD)}, s{S_T2}, v{TMP}')
    o('s_waitcnt lgkmcnt(0)')
    o('s_barrier')
    cm('c constants')
    o('s_waitcnt vmcnt(4)')
    o(f'v_lshlrev_b32 v{CC}, 16, v{CC+2}'); o(f'v_and_b32 v{CC+1}, s{S_T3}, v{CC+2}')
    o(f'v_lshlrev_b32 v{CC+2}, 16, v{CC+3}'); o(f'v_and_b32 v{CC+3}, s{S_T3}, v{CC+3}')
    for j in range(2): o(f'v_pk_mul_f32 {r2(CC+2*j)}, {r2(CC+2*j)}, {s2(S_NL2)}')
    o(f'v_mov_b32 v{TMP}, {FLG}')
    o(f's_mov_b64 exec, {s2(S_BAD)}')
    o(f'ds_write_b32 v{TMP}, v{FOUR}')
    stamp(2)
    cm('rank + place')
    for i in range(4):
        m = MK + 16 + 4*i
        o(f's_mov_b64 exec, {s2(m)}'); o(f's_cbranch_execz K2_HB{i}')
        o(f'ds_add_rtn_u32 v{RK}, v{RDB+4*i+1}, v{FOUR}')
        o(f's_mov_b64 exec, {s2(m+2)}')
        o(f'ds_add_rtn_u32 v{RK+1}, v{RDB+4*i+3}, v{FOUR}')
        o('s_waitcnt lgkmcnt(0)')
        o(f'v_add_u32_sdwa v{RK+1}, v{RK+1}, v{RDB+4*i+3} dst_sel:DWORD dst_unused:UNUSED_PAD src0_sel:BYTE_0 src1_sel:DWORD')
        o(f'ds_write_b32 v{RK+1}, v{RDB+4*i+2} offset:4')
        o(f's_mov_b64 exec, {s2(m)}')
        o(f'v_add_u32_sdwa v{RK}, v{RK}, v{RDB+4*i+1} dst_sel:DWORD dst_unused:UNUSED_PAD src0_sel:BYTE_0 src1_sel:DWORD')
        o(f'ds_write_b32 v{RK}, v{RDB+4*i} offset:4')
        o('s_waitcnt lgkmcnt(0)')
        lab(f'K2_HB{i}')
    for j in range(8):
        if j % 2 == 0: o(f's_waitcnt vmcnt({3-j//2})')
        o(f's_mov_b64 exec, {s2(MK+2*j)}')
        o(f'ds_add_rtn_u32 v{RK+j}, v{RDA+2*j+1}, v{FOUR}')
    for j in range(8):
        o(f's_mov_b64 exec, {s2(MK+2*j)}')
        o('s_waitcnt lgkmcnt(7)')
        o(f'v_add_u32_sdwa v{RK+j}, v{RK+j}, v{RDA+2*j+1} dst_sel:DWORD dst_unused:UNUSED_PAD src0_sel:BYTE_0 src1_sel:DWORD')
        o(f'ds_write_b32 v{RK+j}, v{RDA+2*j} offset:4')
    o('s_mov_b64 exec, -1')
    o(f's_cmp_ge_u32 s{S_W}, 9'); o('s_cbranch_scc1 K2_PW')
    o(f's_cmp_ge_u32 s{S_W}, 4'); o('s_cbranch_scc1 K2_IDLE')
    cm('degree sort (waves 0..3)')
    a, b, c, d, e, f = 40, 41, 42, 43, 44, 45
    o(f'v_mul_u32_u24 v{a}, {ROW}, v0')
    o(f'v_cmp_gt_u32 {s2(MK)}, s{S_N}, v0')
    o(f'v_lshlrev_b32 v{f}, 7, v0')
    o(f'v_lshlrev_b32 v{46}, 2, v{VL}')
    o('s_waitcnt lgkmcnt(0)')
    o('s_barrier')
    stamp(3)
    o(f's_mov_b64 exec, {s2(MK)}')
    o(f'ds_read_b32 v{b}, v{a}')
    o('s_waitcnt lgkmcnt(0)')
    o(f'v_cmp_lt_u32 vcc, 0x100, v{b}')
    o(f'v_add_u32 v{b}, 4, v{b}'); o(f'v_lshrrev_b32 v{b}, 3, v{b}'); o(f'v_min_u32 v{b}, 32, v{b}')
    o(f'v_sub_u32 v{c}, 32, v{b}'); o(f'v_lshlrev_b32 v{c}, 2, v{c}')
    o(f'v_mov_b32 v{d}, 8')
    o(f'ds_add_rtn_u32 v{d}, v{c}, v{d} offset:{BINS}')
    o(f'v_lshl_or_b32 v{e}, v{b}, 16, v{a}')
    o('s_mov_b64 exec, vcc')
    o(f'ds_write_b32 v{TMP}, v{FOUR}')
    o('s_mov_b64 exec, -1')
    o('s_waitcnt lgkmcnt(0)')
    o('s_barrier')
    o(f'ds_read_b32 v{a}, v46 offset:{BINS}')
    o('s_waitcnt lgkmcnt(0)')
    o(f'v_mov_b32 v{b}, v{a}')
    scan(b)
    o(f'v_sub_u32 v{b}, v{b}, v{a}')
    o(f'ds_bpermute_b32 v{b}, v{c}, v{b}')
    o(f's_mov_b64 exec, {s2(MK)}')
    o('s_waitcnt lgkmcnt(0)')
    o(f'v_add_u32 v{b}, v{b}, v{d}')
    o(f'ds_write_b64 v{b}, {r2(e)} offset:{ORDER}')
    o('s_mov_b64 exec, -1')
    o('s_branch K2_C')
    lab('K2_IDLE')
    o('s_waitcnt lgkmcnt(0)')
    o('s_barrier'); o('s_barrier')
    o('s_branch K2_C')
    lab('K2_PW')
    cm('P tile (waves 9..15)')
    o(f's_sub_u32 s{S_T}, s{S_W}, 9'); o(f's_lshl_b32 s{S_T2}, s{S_T}, 12'); o(f's_add_u32 s{S_T3}, s{S_T2}, {XS}')
    tile_addr(VL, PAR, PTRA, TMP+1, TMP+2, S_T3, WST)
    o(f'v_lshrrev_b32 v{TMP+1}, 5, v{VL}'); o(f'v_lshlrev_b32 v{TMP+1}, 9, v{TMP+1}'); o(f'v_and_b32 v{TMP+2}, 31, v{VL}')
    o(f'v_lshl_add_u32 v{TMP+1}, v{TMP+2}, 2, v{TMP+1}'); o(f'v_add_u32 v{TMP+1}, s{S_T2}, v{TMP+1}')
    o('s_waitcnt lgkmcnt(0)')
    o('s_barrier')
    tile_mm(PAR, PTRA, PA, PW, PD, 0, 4096)
    o('s_barrier')
    o('s_nop 6')
    tile_pack(PD, S_NL2)
    for r in range(16):
        if r == 4: o(f's_cmp_eq_u32 s{S_T}, 6'); o('s_cbranch_scc1 K2_C')
        if r == 12: o('s_waitcnt lgkmcnt(4)')
        o(f'ds_write_b32 v{TMP+1}, v{PD+r} offset:{PB+rowof(r)*128}')
    lab('K2_C')
    o(f'v_lshlrev_b32 v{TMP}, 6, v{VL}'); o(f'v_mov_b32 v{TMP+1}, {FLG}')
    o(f'v_cmp_gt_u32 vcc, 25, v{VL}')
    o(f'v_mov_b32 v{VLEN}, 0')
    o('s_waitcnt lgkmcnt(0)')
    o('s_barrier')
    stamp(4)
    o(f'ds_read_b32 v{TMP+1}, v{TMP+1}')
    o('s_mov_b64 exec, vcc')
    o(f'ds_read_u16 v{VLEN}, v{TMP} offset:{ORDER+2}')
    o('s_mov_b64 exec, -1')
    o(f's_cmp_lg_u32 s{S_SAFE}, 0'); o('s_cbranch_scc1 K2_SAFE')
    o('s_waitcnt lgkmcnt(0)')
    o(f'v_readfirstlane_b32 s{S_T}, v{TMP+1}')
    o(f'v_mov_b32 v{VB}, v{VLEN}')
    o(f's_cmp_lg_u32 s{S_T}, 0'); o('s_cbranch_scc1 K2_RESTART')
    for sh in (1, 2, 4, 8):
        o('s_nop 1')
        o(f'v_add_u32_dpp v{VB}, v{VB}, v{VB} row_shr:{sh} row_mask:0xf bank_mask:0xf bound_ctrl:0')
    o('s_nop 1')
    o(f'v_add_u32_dpp v{VB}, v{VB}, v{VB} row_bcast:15 row_mask:0xa bank_mask:0xf')
    o('s_nop 0')
    o(f'v_readlane_b32 s{S_T}, v{VB}, 31')
    o(f'v_sub_u32 v{VB}, v{VB}, v{VLEN}')
    o(f's_add_u32 s{S_Q}, s{S_T}, 15'); o(f's_lshr_b32 s{S_Q}, s{S_Q}, 4')
    o(f's_mul_i32 s{S_T2}, s{S_Q}, s{S_W}')
    o(f's_cmp_ge_u32 s{S_T2}, s{S_T}'); o('s_cbranch_scc1 K2_LOOPDONE')
    o(f'v_cmp_ge_u32 vcc, s{S_T2}, v{VB}')
    o(f's_sub_u32 s{S_REM}, s{S_T}, s{S_T2}'); o(f's_min_u32 s{S_REM}, s{S_REM}, s{S_Q}')
    o(f's_bcnt1_i32_b32 s{S_J}, vcc_lo'); o(f's_sub_u32 s{S_J}, s{S_J}, 1')
    o(f'v_readlane_b32 s{S_OFF}, v{VB}, s{S_J}')
    o(f's_sub_u32 s{S_OFF}, s{S_T2}, s{S_OFF}')
    stamp(5)
    mainloop()
    o('s_branch K2_LOOPDONE')
    safeloop()
    lab('K2_LOOPDONE')
    o('s_waitcnt vmcnt(0) lgkmcnt(0)')
    stamp(6)
    o('s_barrier')
    stamp(7)
    epilogue()
    if OPT['stamp']:
        o('s_waitcnt vmcnt(0)')
        stamp(8)
        emit_stamps(9, 4, 0x810000, 'K2')
    lab('K2_END'); o('s_endpgm')

def consts():
    t = TMP
    srd(SOUT, 54, N*128)
    o(f's_mul_i32 s{S_T2}, s{S_HF}, {TABSTR}'); o(f's_add_u32 s{S_T2}, s{S_T2}, {WS_TAB}')
    o(f's_add_u32 s{ST}, s4, s{S_T2}'); o(f's_addc_u32 s{ST+1}, s5, 0'); o(f's_mov_b32 s{ST+2}, {TABSZ}'); o(f's_mov_b32 s{ST+3}, 0x20000')
    o(f's_movk_i32 s{S_128}, 128'); o(f's_mov_b32 s{S_NL2}, {f2u(-LOG2E):#x}'); o(f's_mov_b32 s{S_NL2+1}, s{S_NL2}')
    o(f's_mov_b32 s{S_T2}, {(65<<16)-1}'); o(f's_mov_b32 s{S_T3}, 0xffff0000'); o(f's_movk_i32 s{S_N}, 200')
    o(f'v_and_b32 v{VJ}, 15, v0'); o(f'v_lshl_add_u32 v{VLB}, v{VJ}, 4, v{VLB}'); o(f'v_lshlrev_b32 v{VJ}, 1, v{VJ}')
    o(f'v_or_b32 v{VJ+1}, 1, v{VJ}'); o(f'v_or_b32 v{VJ+2}, 32, v{VJ}'); o(f'v_or_b32 v{VJ+3}, 33, v{VJ}')
    o(f'v_mov_b32 v{FOUR}, 4')
    o(f'v_lshlrev_b32 v{CD}, 4, v{CD}'); o(f'v_add_u32 v{LC16}, {PB}, v{CD}'); o(f'v_add_u32 v{CD}, 0xffffff80, v{CD}')
    o(f'v_and_b32 v{LA8}, 56, v{VL}'); o(f'v_add_u32 v{LA8}, {ORDER}, v{LA8}')
    o(f'v_lshlrev_b32 v{L16}, 4, v{VL}')
    o(f'v_lshlrev_b32 v{t}, 3, v{VL}'); o(f'v_and_b32 v{t}, 16, v{t}'); o(f'v_mov_b32 v{t+1}, 0x3f80'); o(f'v_lshlrev_b32 v{t}, v{t}, v{t+1}')
    o(f'v_bfe_i32 v{t+1}, v{VL}, 0, 1'); o(f'v_and_b32 v{AI+1}, v{t}, v{t+1}'); o(f'v_sub_u32 v{AI}, v{t}, v{AI+1}')
    o(f'v_mov_b32 v{VMAX}, 0')
    for k in (2, 6): o(f'v_mov_b64 {r2(C0+k)}, 0')

def mfmas(k):
    u = U[k & 1]; d = DB + 8*(k & 1)
    return [f'v_mfma_f32_4x4x4_16b_bf16 {r4(u+8*s+4*j)}, {r2(AI)}, {r2(d+4*s+2*j)}, {r4(C0+4*j)}' for s in range(2) for j in range(2)]
def ec(k):
    u = U[k & 1]; rb = RB + 2*(k & 1)
    return [f'v_pk_fma_f32 {r2(u+8*s+4*j)}, {r2(rb)}, {r2(CC+2*j)}, {r2(u+8*s+4*j)} op_sel:[{s},0,0] op_sel_hi:[{s},1,1]' for s in range(2) for j in range(2)]
def exps(k):
    u = U[k & 1]
    return [f'v_exp_f32 v{u+8*s+4*j+c}, v{u+8*s+4*j+c}' for s in range(2) for j in range(2) for c in range(2)]
def chain(k):
    u = U[k & 1]; x = []
    for s in range(2):
        for kind in range(3):
            for j in range(2):
                p = r2(u+8*s+4*j); h = r2(u+8*s+4*j+2); n = r2(NN+2*j); d = r2(DD+2*j)
                x.append([f'v_pk_fma_f32 {n}, {n}, {p}, {n}', f'v_pk_fma_f32 {n}, {h}, {d}, {n}', f'v_pk_fma_f32 {d}, {d}, {p}, {d}'][kind])
    return x
def loads(k):
    rb = RB + 2*(k & 1); d = DB + 8*(k & 1); x = []
    for s in range(2):
        x.append(f'v_mad_u32_u16 v{TMP+s}, v{rb+s}, s{S_128}, v{CD}')
        x.append(f'buffer_load_dwordx4 {r4(d+4*s)}, v{TMP+s}, {s4(ST)}, 0 offen')
    return x
def recread(k, pair): return f'ds_read2_b32 {r2(RB+2*(k&1))}, v{PTR} offset0:{2*pair+1} offset1:{2*pair+2}'

def mainloop():
    lab('K2_PART')
    o(f's_lshl_b32 s{S_T}, s{S_J}, 6')
    o(f'v_add_u32 v{TMP}, s{S_T}, v{LA8}')
    o(f'ds_read_b64 {r2(TMP+2)}, v{TMP}')
    o(f'v_readlane_b32 s{S_N}, v{VLEN}, s{S_J}')
    o(f's_lshl_b32 s{S_T}, s{S_OFF}, 3')
    for j in range(2): o(f'v_mov_b64 {r2(NN+2*j)}, 0')
    for k in range(4): o(f'v_mov_b32 v{DD+k}, 0x1f800000')
    o(f's_sub_u32 s{S_N}, s{S_N}, s{S_OFF}'); o(f's_min_u32 s{S_N}, s{S_N}, s{S_REM}')
    o(f's_sub_u32 s{S_REM}, s{S_REM}, s{S_N}')
    o('s_waitcnt lgkmcnt(0)')
    o(f'v_add_u32_sdwa v{PTR}, v{TMP+2}, s{S_T} dst_sel:DWORD dst_unused:UNUSED_PAD src0_sel:WORD_0 src1_sel:DWORD')
    o(f'v_add_u32 v{TMP+3}, v{TMP+3}, v{LC16}')
    o(recread(0, 0)); o(recread(1, 1))
    o(f'ds_read_b128 {r4(U[1])}, v{TMP+3}')
    o('s_waitcnt lgkmcnt(2)')
    for s in loads(0): o(s)
    o(f's_cmp_eq_u32 s{S_N}, 1'); o('s_cbranch_scc1 K2_P1')
    o('s_waitcnt lgkmcnt(1)')
    for s in loads(1): o(s)
    o('s_waitcnt lgkmcnt(0)')
    for k in range(4): o(f'v_lshlrev_b32 v{C0+(k&1)+4*(k>>1)}, 16, v{U[1]+k}')
    o('s_waitcnt vmcnt(2)')
    o('s_branch K2_P2')
    lab('K2_P1')
    o('s_waitcnt lgkmcnt(0)')
    for k in range(4): o(f'v_lshlrev_b32 v{C0+(k&1)+4*(k>>1)}, 16, v{U[1]+k}')
    o('s_waitcnt vmcnt(0)')
    o('s_nop 0')
    lab('K2_P2')
    for s in mfmas(0): o(s)
    o('s_nop 4')
    for s in ec(0): o(s)
    o(recread(0, 2))
    o('s_branch K2_X0')
    lab('K2_LOOP')
    for k in range(2):
        for s in ec(k): o(s)
        o(recread(k, 2 + k))
        for s in chain(k ^ 1): o(s)
        lab(f'K2_X{k}')
        e = exps(k); m = mfmas(k + 1); ld = loads(k)
        o(f's_cmp_eq_u32 s{S_N}, 1'); o(f's_cbranch_scc1 K2_LAST{k}')
        o(f's_sub_u32 s{S_N}, s{S_N}, 1')
        o('s_waitcnt vmcnt(0) lgkmcnt(0)')
        for i in range(4): o(m[i]); o(e[i])
        if k == 1: o(f'v_add_u32 v{PTR}, 16, v{PTR}')
        o(f's_cmp_eq_u32 s{S_N}, 1'); o(f's_cbranch_scc1 K2_NOLD{k}')
        o(ld[0]); o(e[4]); o(ld[1]); o(e[5]); o(ld[2]); o(e[6]); o(ld[3]); o(e[7])
        if k == 1: o('s_branch K2_LOOP')
        else: lab('K2_CONT0')
    for k in range(2):
        lab(f'K2_NOLD{k}')
        for s in exps(k)[4:]: o(s)
        o('s_branch ' + ('K2_CONT0' if k == 0 else 'K2_LOOP'))
    for k in range(2):
        lab(f'K2_LAST{k}')
        for s in exps(k): o(s)
        for s in chain(k): o(s)
        if k == 0: o('s_branch K2_FLUSH')
    lab('K2_FLUSH')
    o(f'v_max3_f32 v{VMAX}, v{VMAX}, v{DD}, v{DD+1}'); o(f'v_max3_f32 v{VMAX}, v{VMAX}, v{DD+2}, v{DD+3}')
    for k in range(4): o(f'v_rcp_f32 v{DD+k}, v{DD+k}')
    o(f's_add_u32 s{S_T}, s{S_W}, 25')
    o(f's_cmp_eq_u32 s{S_OFF}, 0'); o(f's_cselect_b32 s{S_T}, s{S_J}, s{S_T}')
    o(f's_lshl_b32 s{S_T}, s{S_T}, 10'); o(f's_add_u32 s{S_T}, s{S_T}, {ACC}')
    o(f'v_add_u32 v{TMP}, s{S_T}, v{L16}')
    for j in range(2): o(f'v_pk_mul_f32 {r2(U[0]+2*j)}, {r2(NN+2*j)}, {r2(DD+2*j)}')
    o(f'ds_write_b128 v{TMP}, {r4(U[0])}')
    o(f's_add_u32 s{S_J}, s{S_J}, 1'); o(f's_mov_b32 s{S_OFF}, 0')
    o(f's_cmp_lg_u32 s{S_REM}, 0'); o('s_cbranch_scc1 K2_PART')

def safeloop():
    lab('K2_SAFE')
    VO = 40; RC = 42; T4 = 44; P4 = 48; Z = 52; Hh = 56; F = 60; AA = 68; ND = 69; EE = 70
    o(f's_lshl_b32 s{S_T}, s{S_BK}, 10'); o(f's_add_u32 s{S_T}, s{S_T}, {WS_OFFT}'); o(f's_lshl_b32 s{S_T2}, s{S_W}, 6'); o(f's_add_u32 s{S_T}, s{S_T}, s{S_T2}')
    o(f'v_and_b32 v{AA}, 15, v{VL}'); o(f'v_lshlrev_b32 v{AA}, 2, v{AA}')
    o(f'buffer_load_dword v{VO}, v{AA}, {s4(SWS)}, s{S_T} offen')
    o(f's_mov_b32 s{S_T3}, 0xffff0000')
    o(f's_mov_b32 s{S_J}, 0')
    o('s_waitcnt vmcnt(0) lgkmcnt(0)')
    lab('K2_SSEG')
    o(f'v_readlane_b32 s{S_N}, v{VO}, s{S_J}')
    o(f's_lshl_b32 s{S_T}, s{S_W}, 4'); o(f's_add_u32 s{S_T}, s{S_T}, s{S_J}'); o(f's_mul_i32 s{S_T}, s{S_T}, {CH}')
    o(f's_and_b32 s{S_T2}, s{S_N}, 0xffff'); o(f's_add_u32 s{S_T}, s{S_T}, s{S_T2}'); o(f's_lshl_b32 s{S_T}, s{S_T}, 3')
    o(f's_lshr_b32 s{S_N}, s{S_N}, 16'); o(f's_lshl_b32 s{S_N}, s{S_N}, 3')
    o(f'v_and_b32 v{AA}, 56, v{VL}')
    lab('K2_SSTEP')
    o(f'v_cmp_gt_u32 vcc, s{S_N}, v{AA}')
    o('s_mov_b64 exec, vcc'); o('s_cbranch_execz K2_SNEXT')
    o(f'buffer_load_dwordx2 {r2(RC)}, v{AA}, {s4(SWS)}, s{S_T} offen')
    o('s_waitcnt vmcnt(0)')
    o(f'v_mad_u32_u16 v{TMP}, v{RC}, s{S_128}, v{CD}')
    o(f'buffer_load_dwordx4 {r4(T4)}, v{TMP}, {s4(ST)}, 0 offen')
    o(f'v_mul_u32_u24 v{ND}, 64528, v{RC+1}'); o(f'v_lshrrev_b32 v{ND}, 24, v{ND}')
    o(f'v_lshl_add_u32 v{TMP+1}, v{ND}, 7, v{LC16}')
    o(f'ds_read_b128 {r4(P4)}, v{TMP+1}')
    o(f'v_and_b32 v{EE}, s{S_T3}, v{RC}')
    o(f'v_subrev_u32 v{TMP+1}, {PB}, v{TMP+1}'); o(f'v_lshlrev_b32 v{TMP+1}, 1, v{TMP+1}')
    o('s_waitcnt vmcnt(0) lgkmcnt(0)')
    for k in range(4):
        o(f'v_lshlrev_b32 v{Z+k}, 16, v{T4+k}'); o(f'v_lshlrev_b32 v{P4+k}, 16, v{P4+k}'); o(f'v_and_b32 v{Hh+k}, s{S_T3}, v{T4+k}')
        o(f'v_add_f32 v{Z+k}, v{Z+k}, v{P4+k}'); o(f'v_fmac_f32 v{Z+k}, v{EE}, v{CC+k}')
    for k in range(4): o(f'v_exp_f32 v{Z+k}, v{Z+k}')
    for k in range(4): o(f'v_add_f32 v{Z+k}, 1.0, v{Z+k}')
    for k in range(4): o(f'v_rcp_f32 v{Z+k}, v{Z+k}')
    for k in range(4): o(f'v_mul_f32 v{Z+k}, v{Z+k}, v{Hh+k}')
    for k in range(4):
        o(f'v_cvt_f64_f32 {r2(F+2*k)}, v{Z+k}')
        o(f'ds_add_f64 v{TMP+1}, {r2(F+2*k)} offset:{8*k}')
    o('s_mov_b64 exec, -1')
    o(f'v_add_u32 v{AA}, 64, v{AA}')
    o('s_waitcnt lgkmcnt(0)')
    o('s_branch K2_SSTEP')
    lab('K2_SNEXT')
    o('s_mov_b64 exec, -1')
    o(f's_add_u32 s{S_J}, s{S_J}, 1'); o(f's_cmp_lt_u32 s{S_J}, 16'); o('s_cbranch_scc1 K2_SSEG')

def epilogue():
    Y = 40; X = 44; G = 48; ND = 52; WQ = 53; OA = 54; F = 56
    o(f's_mov_b32 s{S_J}, s{S_W}')
    o(f's_mov_b32 s{S_T3}, 0xffff0000')
    o(f's_mov_b32 s{MK}, {f2u(2.0**120):#x}'); o(f's_movk_i32 s{MK+1}, 0x207')
    o(f'v_cmp_lt_f32 {s2(S_BAD)}, s{MK}, v{VMAX}')
    o(f'v_mul_u32_u24 v{WQ}, s{S_Q}, v{VL}')
    o(f's_mul_i32 s{S_T}, s{S_BK}, {NB*128}'); o(f's_lshl_b32 s{S_T2}, s{S_HF}, 6'); o(f's_add_u32 s{S_T}, s{S_T}, s{S_T2}')
    o(f'v_and_b32 v{OA}, 7, v{VL}'); o(f'v_lshl_add_u32 v{OA}, v{OA}, 3, s{S_T}')
    lab('K2_EP')
    o(f's_lshl_b32 s{S_T}, s{S_J}, 6')
    o(f'v_add_u32 v{TMP}, s{S_T}, v{LA8}')
    o(f'ds_read_b32 v{ND}, v{TMP} offset:4')
    o(f's_cmp_lg_u32 s{S_SAFE}, 0'); o('s_cbranch_scc1 K2_EPS')
    o(f's_lshl_b32 s{S_T}, s{S_J}, 10'); o(f's_add_u32 s{S_T}, s{S_T}, {ACC}')
    o(f'v_add_u32 v{TMP}, s{S_T}, v{L16}')
    o(f'ds_read_b128 {r4(Y)}, v{TMP}')
    o(f'v_readlane_b32 s{S_T}, v{VB}, s{S_J}'); o(f'v_readlane_b32 s{S_T2}, v{VLEN}, s{S_J}')
    o('s_waitcnt lgkmcnt(1)')
    o(f'v_add_u32 v{TMP+1}, v{ND}, v{LC16}')
    o(f'ds_read_b128 {r4(X)}, v{TMP+1}')
    o(f'v_cmp_lt_u32 vcc, s{S_T}, v{WQ}')
    o(f's_add_u32 s{S_T}, s{S_T}, s{S_T2}')
    o(f'v_cmp_gt_u32 {s2(MK+2)}, s{S_T}, v{WQ}')
    o(f's_and_b32 s{S_N}, vcc_lo, s{MK+2}')
    o(f's_cmp_lg_u32 s{S_T2}, 0'); o('s_cbranch_scc1 K2_EPL')
    o('s_waitcnt lgkmcnt(0)')
    for j in range(2): o(f'v_mov_b64 {r2(Y+2*j)}, 0')
    lab('K2_EPL')
    o(f's_cmp_eq_u32 s{S_N}, 0'); o('s_cbranch_scc1 K2_EPF')
    o(f's_ff1_i32_b32 s{S_T}, s{S_N}'); o(f's_bitset0_b32 s{S_N}, s{S_T}')
    o(f's_lshl_b32 s{S_T}, s{S_T}, 10'); o(f's_add_u32 s{S_T}, s{S_T}, {SPILL}')
    o(f'v_add_u32 v{TMP}, s{S_T}, v{L16}')
    o(f'ds_read_b128 {r4(G)}, v{TMP}')
    o('s_waitcnt lgkmcnt(0)')
    for j in range(2): o(f'v_pk_add_f32 {r2(Y+2*j)}, {r2(Y+2*j)}, {r2(G+2*j)}')
    o('s_branch K2_EPL')
    lab('K2_EPS')
    o('s_waitcnt lgkmcnt(0)')
    o(f'v_add_u32 v{TMP+1}, v{ND}, v{LC16}')
    o(f'ds_read_b128 {r4(X)}, v{TMP+1}')
    o(f'v_subrev_u32 v{TMP}, {PB}, v{TMP+1}'); o(f'v_lshlrev_b32 v{TMP}, 1, v{TMP}')
    o(f'ds_read_b128 {r4(F)}, v{TMP}'); o(f'ds_read_b128 {r4(F+4)}, v{TMP} offset:16')
    o('s_waitcnt lgkmcnt(0)')
    for k in range(4): o(f'v_cvt_f32_f64 v{Y+k}, {r2(F+2*k)}')
    lab('K2_EPF')
    o('s_waitcnt lgkmcnt(0)')
    for k in range(4): o(f'v_and_b32 v{X+k}, s{S_T3}, v{X+k}')
    o(f'v_cmp_gt_u32 vcc, {NB*128}, v{ND}')
    for j in range(2): o(f'v_pk_add_f32 {r2(Y+2*j)}, {r2(Y+2*j)}, {r2(X+2*j)}')
    o('s_mov_b64 exec, vcc')
    for j in range(2): o(f'v_pk_mul_f32 {r2(X+2*j)}, {r2(Y+2*j)}, {s2(S_NL2)}')
    for k in range(4): o(f'v_exp_f32 v{X+k}, v{X+k}')
    o(f'v_pk_add_f32 {r2(G)}, {r2(Y)}, {r2(Y+2)}')
    for j in range(2): o(f'v_pk_add_f32 {r2(X+2*j)}, {r2(X+2*j)}, 1.0 op_sel_hi:[1,0]')
    o(f'v_add_f32 v{G}, v{G}, v{G+1}')
    for k in range(4): o(f'v_rcp_f32 v{X+k}, v{X+k}')
    o(f'v_cmp_class_f32 vcc, v{G}, s{MK+1}')
    o(f'v_add_u32 v{ND}, v{ND}, v{OA}')
    for j in range(2): o(f'v_pk_mul_f32 {r2(Y+2*j)}, {r2(Y+2*j)}, {r2(X+2*j)}')
    o(f's_or_b64 {s2(S_BAD)}, {s2(S_BAD)}, vcc')
    o(f'v_cvt_pk_bf16_f32 v{Y}, v{Y}, v{Y+1}'); o(f'v_cvt_pk_bf16_f32 v{Y+1}, v{Y+2}, v{Y+3}')
    o(f'buffer_store_dwordx2 {r2(Y)}, v{ND}, {s4(SOUT)}, 0 offen')
    o('s_mov_b64 exec, -1')
    o(f's_add_u32 s{S_J}, s{S_J}, 16'); o(f's_cmp_lt_u32 s{S_J}, 25'); o('s_cbranch_scc1 K2_EP')
    o(f's_cmp_lg_u32 s{S_SAFE}, 0'); o('s_cbranch_scc1 K2_DONE')
    o(f'v_mov_b32 v{TMP}, {FLG}')
    o(f's_mov_b64 exec, {s2(S_BAD)}')
    o(f'ds_write_b32 v{TMP}, v{TMP}')
    o('s_mov_b64 exec, -1')
    o('s_waitcnt lgkmcnt(0)')
    o('s_barrier')
    o(f'ds_read_b32 v{TMP}, v{TMP}')
    o('s_waitcnt lgkmcnt(0)')
    o(f'v_readfirstlane_b32 s{S_T}, v{TMP}')
    o(f's_cmp_eq_u32 s{S_T}, 0'); o('s_cbranch_scc1 K2_DONE')
    lab('K2_RESTART')
    o(f's_mov_b32 s{S_SAFE}, 1')
    o('s_waitcnt vmcnt(0)')
    o('s_barrier')
    o('s_branch K2_TOP')
    lab('K2_DONE')

def kd(name, vgpr, sgpr):
    L.extend([f'.amdhsa_kernel {name}', f'  .amdhsa_next_free_vgpr {vgpr}', f'  .amdhsa_next_free_sgpr {sgpr}',
        f'  .amdhsa_accum_offset {(vgpr+3)//4*4}', '  .amdhsa_group_segment_fixed_size 0', '  .amdhsa_kernarg_size 80',
        '  .amdhsa_user_sgpr_count 2', '  .amdhsa_user_sgpr_kernarg_segment_ptr 1', '  .amdhsa_system_sgpr_workgroup_id_x 1',
        '  .amdhsa_float_denorm_mode_32 3', '.end_amdhsa_kernel'])

for h in open('cdna_kernels/' + NAME + '.s.ref').read().split('\n'):
    if h.startswith(';') and '@launch' not in h and 'Override' not in h and 'grid=ceil' not in h: L.append(h)
L.append(f'; @launch kernel=part_kernel grid=(256,1,1) block=(960,1,1) lds={K1_LDS}')
L.append(f'; @launch kernel={NAME}_kernel grid=(256,1,1) block=(1024,1,1) lds={K2_LDS}')
L.append('.amdgcn_target "amdgcn-amd-amdhsa--gfx950"')
L.append('.text')
L.append('.globl part_kernel'); L.append(f'.globl {NAME}_kernel')
k1(); k2()
L.append('.section .rodata,"a"'); L.append('.p2align 6')
kd('part_kernel', 96, 102)
L.append('.p2align 6')
kd(f'{NAME}_kernel', NVG, 102)
open(OPT.get('out', 'cdna_kernels/' + NAME + '.s'), 'w').write('\n'.join(L) + '\n')
```

```python
import sys
src, out, kern, idx, amp, mm = sys.argv[1], sys.argv[2], int(sys.argv[3]), int(sys.argv[4]), int(sys.argv[5]), sys.argv[6]
mode = sys.argv[7] if len(sys.argv) > 7 else 'cold'
s = open(src).read(); l = s.split('\n'); i = [k for k, x in enumerate(l) if '@launch' in x]
l.insert(i[-1]+1, '; @launch kernel=diag_kernel grid=(1,1,1) block=(64,1,1) lds=0')
off = (0xc00000 if kern == 1 else 0xc10000) + 4*idx
code = f'''
.p2align 8
.globl diag_kernel
.type diag_kernel,@function
diag_kernel:
    s_cmp_ge_u32 s2, 1
    s_cbranch_scc1 DG_END
    s_load_dwordx2 s[4:5], s[0:1], 72
    s_waitcnt lgkmcnt(0)
    s_mov_b32 s6, 0x1000000
    s_mov_b32 s7, 0x20000
    v_lshlrev_b32 v1, 6, v0
    s_mov_b32 s8, 0xc00000
    s_mov_b32 s9, {off}
''' + ''.join(f'''    buffer_load_dword v{2+k}, v1, s[4:7], s8 offen
    buffer_load_dword v{6+k}, v1, s[4:7], s9 offen
    v_add_u32 v1, 4096, v1
''' for k in range(4)) + f'''    s_waitcnt vmcnt(0)
    v_min3_u32 v2, v2, v3, v4
    v_min_u32 v2, v2, v5
    v_{mm}3_u32 v6, v6, v7, v8
    v_{mm}_u32 v6, v6, v9
    s_mov_b32 s10, 0
    s_mov_b32 s11, -1
    s_mov_b32 s12, {0 if mm=='max' else -1}
DG_L:
    s_nop 4
    v_readlane_b32 s13, v2, s10
    v_readlane_b32 s14, v6, s10
    s_min_u32 s11, s11, s13
    s_{mm}_u32 s12, s12, s14
    s_add_u32 s10, s10, 1
    s_cmp_lt_u32 s10, 64
    s_cbranch_scc1 DG_L
    s_sub_u32 s12, s12, s11
    s_min_u32 s12, s12, 20000
    s_mul_i32 s12, s12, {amp}
    v_mov_b32 v1, 0
    s_mov_b32 s8, 0xd00000
    buffer_load_dword v2, v1, s[4:7], s8 offen
    v_mov_b32 v3, 0x5eed1234
    s_waitcnt vmcnt(0)
    buffer_store_dword v3, v1, s[4:7], s8 offen
    v_readfirstlane_b32 s13, v2
    s_cmp_{'eq' if mode == 'cold' else 'lg'}_u32 s13, 0x5eed1234
    s_cselect_b32 s12, 0, s12
    s_memrealtime s[14:15]
    s_waitcnt lgkmcnt(0)
DG_S:
    s_memrealtime s[16:17]
    s_waitcnt lgkmcnt(0)
    s_sub_u32 s18, s16, s14
    s_cmp_lt_u32 s18, s12
    s_cbranch_scc1 DG_S
DG_END:
    s_endpgm
.section .rodata,"a"
.p2align 6
.amdhsa_kernel diag_kernel
  .amdhsa_next_free_vgpr 16
  .amdhsa_next_free_sgpr 32
  .amdhsa_accum_offset 16
  .amdhsa_group_segment_fixed_size 0
  .amdhsa_kernarg_size 80
  .amdhsa_user_sgpr_count 2
  .amdhsa_user_sgpr_kernarg_segment_ptr 1
  .amdhsa_system_sgpr_workgroup_id_x 1
.end_amdhsa_kernel
'''
t = '\n'.join(l).replace('.section .rodata,"a"', code, 1)
open(out, 'w').write(t)
```
